```python
import torch

def _softmax(x, axis=-1):
    return torch.softmax(x, dim=axis)
def _gelu(x):
    return torch.nn.functional.gelu(x, approximate="tanh")
def _silu(x):
    return torch.nn.functional.silu(x)
def _sigmoid(x):
    return torch.sigmoid(x)
def _layernorm(x, axis=-1, eps=1e-5):
    m = x.mean(dim=axis, keepdim=True)
    v = x.var(dim=axis, keepdim=True, unbiased=False)
    return (x - m) / torch.sqrt(v + eps)
def _scatter_add(tgt, idx, src, axis=0):
    return tgt.clone().index_add_(axis, idx, src)
def _segment_sum(src, seg, n):
    out = torch.zeros((n,) + src.shape[1:], dtype=src.dtype)
    return out.index_add_(0, seg, src)
def _pad(x, pw):
    flat = tuple(v for pair in reversed(pw) for v in pair)
    return torch.nn.functional.pad(x, flat)

kernel_name = 'parallel_sum__ssm_conv_s4d__glu_gated_glu__prompt'

def setup_inputs():

    _w = (lambda a: (lambda t: t.to(torch.bfloat16) if t.is_floating_point() else t)(torch.as_tensor(a)))
    def _A_setup():
        Bsz, L, D, N = 1, 2048, 512, 128
        return {
            "u": _w((lambda *s: torch.randn(*s, dtype=torch.bfloat16) * 0.05)(Bsz, L, D)),
            "log_A_real": _w((lambda *s: torch.randn(*s, dtype=torch.bfloat16) * 3.2)(D, N) * 0.5),
            "A_imag": _w((lambda *s: torch.randn(*s, dtype=torch.bfloat16) * 0.1)(D, N) * 3.14),
            "C_real": _w((lambda *s: torch.randn(*s, dtype=torch.bfloat16) * 0.8)(D, N) / N ** 0.5),
            "C_imag": _w((lambda *s: torch.randn(*s, dtype=torch.bfloat16) * 0.8)(D, N) / N ** 0.5),
            "log_dt": _w((lambda *s: torch.randn(*s, dtype=torch.bfloat16) * 0.1)(D) * 0.5 - 4.0),
            "D_skip": _w((lambda *s: torch.randn(*s, dtype=torch.bfloat16) * 0.1)(D)),
        }
    _A_in = _A_setup()

    def _B_setup():
        B, S, D, F = 1, 2048, 512, 1376
        return {
            "x": _w((lambda *s: torch.randn(*s, dtype=torch.bfloat16) * 0.05)(B, S, D)),
            "w_gate": _w((lambda *s: torch.randn(*s, dtype=torch.bfloat16) * 0.05)(D, F)),
            "w_up": _w((lambda *s: torch.randn(*s, dtype=torch.bfloat16) * 0.05)(D, F)),
            "w_down": _w((lambda *s: torch.randn(*s, dtype=torch.bfloat16) * 0.05)(F, D)),
        }
    _B_in = _B_setup()

    return {
        "A_u": _A_in["u"],
        "A_log_A_real": _A_in["log_A_real"],
        "A_A_imag": _A_in["A_imag"],
        "A_C_real": _A_in["C_real"],
        "A_C_imag": _A_in["C_imag"],
        "A_log_dt": _A_in["log_dt"],
        "A_D_skip": _A_in["D_skip"],
        "B_x": _B_in["x"],
        "B_w_gate": _B_in["w_gate"],
        "B_w_up": _B_in["w_up"],
        "B_w_down": _B_in["w_down"],
    }

def reference(A_u, A_log_A_real, A_A_imag, A_C_real, A_C_imag, A_log_dt, A_D_skip, B_x, B_w_gate, B_w_up, B_w_down):
    def _A_ref(u, log_A_real, A_imag, C_real, C_imag, log_dt, D_skip):
        L = u.shape[1]
        dt = torch.exp(log_dt)
        A = -torch.exp(log_A_real) + 1j * A_imag
        C = (C_real + 1j * C_imag) * dt[:, None]
        pos = (lambda x, dt: x.to(dt))(torch.arange(L), log_dt.dtype)
        P = torch.exp((A * dt[:, None])[:, :, None] * pos[None, None, :])
        K = 2.0 * torch.einsum("dn,dnl->dl", C, P).real
        L2 = 2 * L
        u_t = (lambda x, *d: x.permute(*d))(u, 0, 2, 1)
        Kf = (lambda x, *a, **k: torch.fft.rfft(x.float(), *a, **k))(K, L2)
        Uf = (lambda x, *a, **k: torch.fft.rfft(x.float(), *a, **k))(u_t, L2)
        y = (lambda x, *a, **k: torch.fft.irfft(x, *a, **k).to(torch.bfloat16))(Uf * Kf[None, :, :], L2)[:, :, :L]
        y = (lambda x, *d: x.permute(*d))(y, 0, 2, 1)
        return y + u * D_skip[None, None, :]

    def _B_ref(x, w_gate, w_up, w_down):
        g = torch.einsum("bsd,df->bsf", x, w_gate)
        u = torch.einsum("bsd,df->bsf", x, w_up)
        h = _sigmoid(g) * u
        return torch.einsum("bsf,fd->bsd", h, w_down)

    x = A_u
    xn = _layernorm(x, axis=-1)
    return x + _A_ref(xn, A_log_A_real, A_A_imag, A_C_real, A_C_imag, A_log_dt, A_D_skip) + _B_ref(xn, B_w_gate, B_w_up, B_w_down)
```

```python
import re

TRANS = ("v_exp_f32", "v_log_f32", "v_rcp_f32", "v_rsq_f32", "v_sqrt_f32", "v_sin_f32", "v_cos_f32",
         "v_rcp_iflag_f32", "v_exp_f16", "v_rcp_f16")

def _regs(tok):
    tok = tok.strip()
    neg = tok.startswith("-")
    if neg: tok = tok[1:]
    m = re.match(r"^(abs\(|\|)(.*?)(\)|\|)$", tok)
    if m: tok = m.group(2)
    m = re.match(r"^([vsa])\[(\d+):(\d+)\]$", tok)
    if m:
        return [f"{m.group(1)}{i}" for i in range(int(m.group(2)), int(m.group(3)) + 1)]
    m = re.match(r"^([vsa])(\d+)$", tok)
    if m:
        return [tok]
    if tok in ("vcc", "vcc_lo", "vcc_hi"): return ["vcc"]
    if tok in ("exec", "exec_lo", "exec_hi"): return ["exec"]
    if tok == "m0": return ["m0"]
    if tok == "scc": return ["scc"]
    return []

class Ins:
    __slots__ = ("text", "op", "ops", "mods", "wr", "rd", "kind", "passes", "srcA", "srcB", "srcC", "isdpp", "label")
    def __init__(self, text):
        self.text = text
        t = text.split(";")[0].strip()
        self.label = None
        self.kind = "other"
        self.wr = []; self.rd = []
        self.passes = 0
        self.srcA = self.srcB = self.srcC = []
        self.isdpp = False
        if not t or t.startswith("."):
            self.op = ""; self.kind = "none"; return
        if t.endswith(":"):
            self.op = ""; self.kind = "label"; self.label = t[:-1]; return
        parts = t.split(None, 1)
        self.op = op = parts[0]
        rest = parts[1] if len(parts) > 1 else ""
        ops = []; depth = 0; cur = ""
        for ch in rest:
            if ch in "[(": depth += 1
            if ch in "])": depth -= 1
            if ch == "," and depth == 0:
                ops.append(cur.strip()); cur = ""
            else:
                cur += ch
        if cur.strip(): ops.append(cur.strip())
        mods = ""
        if ops:
            last = ops[-1].split(None, 1)
            ops[-1] = last[0]
            mods = last[1] if len(last) > 1 else ""
        self.ops = ops; self.mods = mods
        R = lambda i: _regs(ops[i]) if i < len(ops) else []
        allr = lambda a: sum((_regs(o) for o in ops[a:]), [])
        base = re.sub(r"_(e32|e64|dpp|sdwa)$", "", op)
        if "row_" in mods or "quad_perm" in mods or op.endswith("_dpp") or "wave_" in mods:
            self.isdpp = True
        if op.startswith("v_mfma"):
            self.kind = "mfma"
            self.wr = R(0); self.srcA = R(1); self.srcB = R(2); self.srcC = R(3)
            self.rd = self.srcA + self.srcB + self.srcC
            if "32x32x16" in op or "32x32x8" in op: self.passes = 8
            elif "16x16x32" in op or "16x16x16" in op: self.passes = 4
            else: raise ValueError("unknown mfma " + op)
        elif op.startswith("v_cmp"):
            self.kind = "valu"; self.wr = R(0); self.rd = allr(1)
            if op.startswith("v_cmpx"): self.wr = self.wr + ["exec"]
        elif base in ("v_readfirstlane_b32", "v_readlane_b32"):
            self.kind = "valu"; self.wr = R(0); self.rd = allr(1)
        elif base.startswith("v_permlane") and "swap" in base:
            self.kind = "valu"; self.wr = R(0) + R(1); self.rd = R(0) + R(1)
        elif op.startswith("v_"):
            self.kind = "valu"
            self.wr = R(0); self.rd = allr(1)
            if base in ("v_add_co_u32", "v_sub_co_u32", "v_addc_co_u32", "v_subb_co_u32", "v_subrev_co_u32"):
                self.wr = R(0) + R(1); self.rd = allr(2)
            if base in ("v_fmac_f32", "v_dot2c_f32_bf16", "v_fmac_f16", "v_dot2c_f32_f16", "v_pk_fmac_f16", "v_mac_f32", "v_writelane_b32") or "d16" in base:
                self.rd = self.rd + R(0)
            if base == "v_cndmask_b32" and len(ops) == 3: self.rd = self.rd + ["vcc"]
            if self.isdpp: self.rd = self.rd + R(0)
            if base in TRANS: self.kind = "trans"
        elif op.startswith("ds_"):
            self.kind = "ds"
            if op.startswith("ds_read") or op.startswith("ds_bpermute") or op.startswith("ds_permute") or op.startswith("ds_swizzle") or "_rtn" in op:
                self.wr = R(0); self.rd = allr(1)
                if "d16" in op: self.rd = self.rd + R(0)
            else:
                self.rd = allr(0)
        elif op.startswith("buffer_") or op.startswith("global_") or op.startswith("flat_"):
            self.kind = "vmem"
            islds = re.search(r"\blds\b", mods) is not None or "load_lds" in op
            if "load" in op and not islds:
                self.wr = R(0); self.rd = allr(1)
                if "d16" in op: self.rd = self.rd + R(0)
            elif "atomic" in op and ("sc0" in mods):
                self.wr = R(0); self.rd = allr(0)
            else:
                self.rd = allr(0)
            if islds: self.rd = self.rd + ["m0"]; self.kind = "vmem_lds"
            if "store" in op and ("x3" in op or "x4" in op): self.kind = "vmem_wstore"
        elif op.startswith("s_"):
            self.kind = "salu"
            if op in ("s_nop", "s_waitcnt", "s_barrier", "s_endpgm", "s_branch", "s_sleep", "s_setprio") or op.startswith("s_cbranch") or op.startswith("s_cmp") or op == "s_sethalt":
                self.rd = allr(0)
            elif op.startswith("s_load") or op.startswith("s_buffer_load") or op in ("s_memtime", "s_memrealtime"):
                self.kind = "smem"; self.wr = R(0); self.rd = allr(1)
            else:
                self.wr = R(0); self.rd = allr(1)
                if "saveexec" in op: self.wr = self.wr + ["exec"]

    def states(self):
        if self.kind in ("none", "label"): return 0
        if self.op == "s_nop": return int(self.ops[0], 0) + 1
        return 1

def need(prod, cons):
    n = 0
    pw = set(prod.wr)
    cr = set(cons.rd); cw = set(cons.wr)
    pv = prod.kind in ("valu", "trans")
    cv = cons.kind in ("valu", "trans")
    vreg = lambda s: {r for r in s if r[0] in "va" and r != "vcc"}
    sreg = lambda s: {r for r in s if r[0] == "s" or r == "vcc"}
    if pv:
        vw = vreg(pw); sw = sreg(pw)
        if vw & cr:
            if cons.isdpp and cv: n = max(n, 2)
            if cons.op.startswith("v_readlane") or cons.op.startswith("v_readfirstlane"): n = max(n, 1)
            if cons.op.startswith("v_permlane"): n = max(n, 2)
            if cons.kind == "mfma": n = max(n, 2)
            if prod.kind == "trans" and cons.kind == "valu": n = max(n, 1)
            if ("sdwa" in prod.op and "dst_sel" in prod.mods and "dst_sel:DWORD" not in prod.mods) and cv: n = max(n, 1)
        if sw & cr:
            if cv:
                n = max(n, 2)
                if cons.op.startswith("v_readlane") or cons.op.startswith("v_writelane"): n = max(n, 4)
            if cons.kind.startswith("vmem"): n = max(n, 5)
        if "exec" in pw:
            if cons.kind == "mfma": n = max(n, 4)
            if cons.isdpp: n = max(n, 5)
            if cv: n = max(n, 4)
    if prod.kind == "mfma":
        D = set(prod.wr)
        p4 = prod.passes == 4
        if cons.kind == "mfma":
            C = set(cons.srcC)
            if D & C:
                if cons.srcC == prod.wr and cons.passes == prod.passes: pass
                else: n = max(n, 6 if p4 else 10)
            if D & (set(cons.srcA) | set(cons.srcB)): n = max(n, 8 if p4 else 12)
            if D & set(cons.wr) and not (D & C): n = max(n, 8 if p4 else 12)
        else:
            if D & (cr | cw): n = max(n, 8 if p4 else 12)
            if cv and (set(prod.srcC) & cw): n = max(n, 3 if p4 else 7)
    if prod.kind == "vmem_wstore":
        data = set(_regs(prod.ops[0])) if prod.op.startswith("buffer") else set(_regs(prod.ops[1]))
        if data & cw: n = max(n, 2)
    if prod.kind == "salu" and "m0" in pw and cons.kind == "vmem_lds": n = max(n, 1)
    return n

MAXD = 14

class Asm:
    def __init__(self):
        self.items = []
    def __call__(self, text):
        for line in text.split("\n"):
            if line.strip() == "": continue
            self.items.append(Ins(line.strip()))
    def label(self, name): self(name + ":")
    def raw(self, text):
        i = Ins(""); i.text = text; self.items.append(i)
    def _fix_linear(self):
        out = []
        for ins in self.items:
            if ins.kind in ("none", "label"):
                out.append(ins); continue
            dist = 0; req = 0
            for p in reversed(out):
                if p.kind in ("none", "label"): continue
                n = need(p, ins)
                if n > dist: req = max(req, n - dist)
                dist += p.states()
                if dist >= MAXD: break
            while req > 0:
                k = min(req, 16)
                out.append(Ins(f"s_nop {k-1}")); req -= k
            out.append(ins)
        self.items = out
    def _fix_backedges(self):
        labels = {ins.label: i for i, ins in enumerate(self.items) if ins.kind == "label"}
        changed = True
        while changed:
            changed = False
            labels = {ins.label: i for i, ins in enumerate(self.items) if ins.kind == "label"}
            for bi, b in enumerate(self.items):
                if b.kind == "salu" and (b.op.startswith("s_cbranch") or b.op == "s_branch"):
                    tgt = b.ops[0]
                    if tgt not in labels: continue
                    ti = labels[tgt]
                    tail = [x for x in self.items[max(0, bi - 40):bi + 1] if x.kind not in ("none", "label")]
                    head = []
                    d = 0
                    for x in self.items[ti:]:
                        if x.kind in ("none", "label"): continue
                        head.append(x); d += x.states()
                        if d >= MAXD or x.op in ("s_branch", "s_endpgm"): break
                    req = 0
                    hd = 0
                    for h in head:
                        dist = hd
                        for p in reversed(tail):
                            n = need(p, h)
                            if n > dist: req = max(req, n - dist)
                            dist += p.states()
                            if dist >= MAXD: break
                        hd += h.states()
                    if req > 0:
                        self.items.insert(bi, Ins(f"s_nop {req-1}"))
                        changed = True
                        break
    def finish(self):
        self._fix_linear()
        self._fix_backedges()
        out = []
        for ins in self.items:
            if ins.kind == "label": out.append(ins.text)
            elif ins.kind == "none": out.append(ins.text)
            else: out.append("    " + ins.text)
        return "\n".join(out) + "\n"

def kernel_desc(name, vgpr, sgpr=102, accum=None):
    accum = accum if accum is not None else ((vgpr + 3) // 4) * 4
    return f""".section .rodata,"a"
.p2align 6
.amdhsa_kernel {name}
  .amdhsa_next_free_vgpr {vgpr}
  .amdhsa_next_free_sgpr {sgpr}
  .amdhsa_accum_offset {accum}
  .amdhsa_group_segment_fixed_size 0
  .amdhsa_kernarg_size 112
  .amdhsa_user_sgpr_count 2
  .amdhsa_user_sgpr_kernarg_segment_ptr 1
  .amdhsa_system_sgpr_workgroup_id_x 1
.end_amdhsa_kernel
.text
"""
def kernel_head(name):
    return f""".globl {name}
.p2align 8
.type {name},@function
{name}:
"""

class Trk:
    def __init__(self, a, which):
        self.a = a; self.which = which; self.q = []
        self.maxn = 15 if which == "lgkmcnt" else 63
    def issue(self, tags):
        self.q.append(set(tags))
    def need(self, tags):
        tags = set(tags)
        last = -1
        for i, s in enumerate(self.q):
            if s & tags: last = i
        if last < 0: return
        n = len(self.q) - 1 - last
        self.a(f"s_waitcnt {self.which}({min(n, self.maxn)})")
        keep = min(n, self.maxn)
        self.q = self.q[len(self.q) - keep:] if keep > 0 else []
    def drain(self):
        if self.q:
            self.a(f"s_waitcnt {self.which}(0)")
        self.q = []
def vr(b, n):
    return f"v[{b}:{b+n-1}]" if n > 1 else f"v{b}"
def vl(b, n):
    return [f"v{i}" for i in range(b, b + n)]
```

```python
from asmlib import *
NAME = "parallel_sum__ssm_conv_s4d__glu_gated_glu__prompt"
KA = dict(x=0, lar=8, aim=16, cr=24, ci=32, ldt=40, dsk=48, bx=56, wg=64, wu=72, wd=80, out=88, dbg=96, ws=104)
L, D, NM, F = 2048, 512, 128, 1376
WS_XN = 0
WS_XT = 2 << 20
WS_AT = 4 << 20
WS_HF = 6 << 20
HF_BYTES = 128 * 43 * 1024
LOG2E = 0x3fb8aa3b
INV2PI = 0x3e22f983
EPS = 0x3727c5ac

def srd(a, s, ptr, nbytes, add=0):
    if add:
        a(f"s_add_u32 s{s}, s{ptr}, {add}")
        a(f"s_addc_u32 s{s+1}, s{ptr+1}, 0")
    else:
        a(f"s_mov_b32 s{s}, s{ptr}")
        a(f"s_mov_b32 s{s+1}, s{ptr+1}")
    a(f"s_mov_b32 s{s+2}, {nbytes}")
    a(f"s_mov_b32 s{s+3}, 0x20000")

def round_bf16(a, dst, src):
    a(f"v_cvt_pk_bf16_f32 v{dst}, v{src}, v{src}")
    a(f"v_and_b32 v{dst}, 0xffff0000, v{dst}")

def wave_sum(a, regs, tmp_s):
    for pat in ("quad_perm:[1,0,3,2]", "quad_perm:[2,3,0,1]", "row_half_mirror", "row_mirror"):
        for r in regs:
            a(f"v_add_f32_dpp v{r}, v{r}, v{r} {pat} row_mask:0xf bank_mask:0xf")
    for pat, rm in (("row_bcast:15", "0xa"), ("row_bcast:31", "0xc")):
        for r in regs:
            a(f"v_add_f32_dpp v{r}, v{r}, v{r} {pat} row_mask:{rm} bank_mask:0xf")
    for r, s in zip(regs, tmp_s):
        a(f"v_readlane_b32 s{s}, v{r}, 63")

STAMP = False
WS_STAMP = 64 << 20
class Stamps:
    def __init__(self, a, kidx):
        self.a = a; self.n = 0; self.kidx = kidx
    def mark(self):
        import common
        if not common.STAMP: return
        a = self.a
        a("s_waitcnt lgkmcnt(0)")
        a("s_memtime s[78:79]")
        a("s_waitcnt lgkmcnt(0)")
        a(f"s_mov_b32 s{80 + self.n}, s78")
        self.n += 1
    def flush(self, ws_ptr, wave_sgpr, nwaves=4):
        import common
        if not common.STAMP: return
        a = self.a
        a(f"s_add_u32 s76, s{ws_ptr}, {WS_STAMP + self.kidx * (1 << 20)}")
        a(f"s_addc_u32 s77, s{ws_ptr+1}, 0")
        a(f"s_lshl_b32 s75, s2, 3")
        a(f"s_add_u32 s75, s75, s{wave_sgpr}")
        a(f"s_lshl_b32 s75, s75, 6")
        a("s_add_u32 s76, s76, s75"); a("s_addc_u32 s77, s77, 0")
        a("v_mov_b32 v0, 0")
        for i in range(self.n):
            a(f"v_mov_b32 v1, s{80+i}")
            a(f"global_store_dword v0, v1, s[76:77] offset:{4*i}")
        a("s_waitcnt vmcnt(0)")
```

```python
from common import *
G1_SLOT = 40960
G1_NS = 3
G1_LDS = G1_SLOT * G1_NS
ROUND_GLU = True

def gen_gemm1(name="gemm1_kernel", src_ws_off=WS_XN):
    a = Asm()
    stp = Stamps(a, 2)
    a("s_cmp_ge_u32 s2, 256")
    a("s_cbranch_scc1 G1_END")
    stp.mark()
    a(f"s_load_dwordx4 s[4:7], s[0:1], {KA['wg']}")
    a(f"s_load_dwordx2 s[16:17], s[0:1], {KA['ws']}")
    a("v_and_b32 v1, 63, v0")
    a("v_lshrrev_b32 v2, 6, v0")
    a("s_nop 0")
    a("v_readfirstlane_b32 s18, v2")
    a("s_and_b32 s19, s2, 7"); a("s_lshr_b32 s20, s2, 3")
    a("s_and_b32 s21, s19, 1"); a("s_lshl_b32 s21, s21, 3"); a("s_and_b32 s22, s20, 7"); a("s_add_u32 s21, s21, s22")
    a("s_lshr_b32 s22, s19, 1"); a("s_lshl_b32 s22, s22, 2"); a("s_lshr_b32 s23, s20, 3"); a("s_add_u32 s22, s22, s23")
    a("s_lshl_b32 s23, s22, 3"); a("s_mul_i32 s23, s23, 21846"); a("s_lshr_b32 s23, s23, 16")
    a("s_waitcnt lgkmcnt(0)")
    srd(a, 24, 4, D * F * 2); srd(a, 28, 6, D * F * 2)
    srd(a, 32, 16, 2 << 20, src_ws_off)
    srd(a, 36, 16, HF_BYTES, WS_HF)
    a("v_lshrrev_b32 v3, 3, v1"); a("v_and_b32 v4, 7, v1"); a("v_lshrrev_b32 v5, 1, v3")
    a("v_xor_b32 v6, v4, v5")
    a("v_xor_b32 v7, 4, v6")
    a("v_lshlrev_b32 v3, 10, v3")
    a("v_lshl_add_u32 v10, v6, 4, v3")
    a("v_lshl_add_u32 v11, v7, 4, v3")
    for t in range(3):
        a(f"v_add_u32 v3, {64*t}, v1")
        a("v_mul_u32_u24 v4, 5462, v3"); a("v_lshrrev_b32 v4, 16, v4")
        a("v_mul_u32_u24 v5, 12, v4"); a("v_sub_u32 v5, v3, v5")
        a("v_bfe_u32 v6, v4, 3, 1"); a("v_lshlrev_b32 v6, 1, v6"); a("v_xor_b32 v5, v5, v6")
        a("v_mul_u32_u24 v4, 2752, v4")
        a(f"v_lshl_add_u32 v{12+t}, v5, 4, v4")
    a("s_lshl_b32 s40, s21, 17"); a("s_lshl_b32 s41, s18, 15"); a("s_add_u32 s40, s40, s41")
    a("s_mul_i32 s41, s18, 44032"); a("s_lshl_b32 s42, s23, 6"); a("s_add_u32 s41, s41, s42")
    a("s_lshl_b32 s42, s18, 12")
    a("s_mul_i32 s43, s18, 3072"); a("s_add_u32 s43, s43, 16384")
    def dma_stage(stage, slot):
        sb = slot * G1_SLOT
        for t in range(4):
            a(f"s_add_u32 m0, s42, {sb + t*1024}")
            a(f"s_add_u32 s44, s40, {t*8192 + stage*128}")
            a(f"buffer_load_dwordx4 v{10 + (t&1)}, s[32:35], s44 offen lds")
        for m in range(2):
            for t in range(3):
                a(f"s_add_u32 m0, s43, {sb + m*12288 + t*1024}")
                if t == 0 and m == 0:
                    a(f"s_add_u32 s44, s41, {stage*64*2752}")
                a(f"buffer_load_dwordx4 v{12+t}, s[{24+4*m}:{27+4*m}], s44 offen lds")
    for s in range(G1_NS): dma_stage(s, s)
    a("s_lshr_b32 s45, s18, 1"); a("s_and_b32 s46, s18, 1")
    a("v_and_b32 v3, 15, v1"); a("v_lshrrev_b32 v4, 4, v1")
    a("v_lshrrev_b32 v5, 1, v3"); a("v_xor_b32 v5, v5, v4"); a("v_lshlrev_b32 v5, 4, v5")
    a("v_lshl_add_u32 v5, v3, 7, v5")
    a("s_lshl_b32 s47, s45, 13")
    a("v_add_u32 v16, s47, v5")
    a("v_xor_b32 v17, 64, v16")
    a("v_lshrrev_b32 v5, 2, v3"); a("v_lshl_add_u32 v5, v4, 3, v5"); a("v_mul_u32_u24 v5, 192, v5")
    a("v_and_b32 v6, 1, v3"); a("v_lshl_add_u32 v5, v6, 3, v5"); a("v_add_u32 v5, 16384, v5")
    a("v_bfe_u32 v6, v3, 1, 1")
    a("v_and_b32 v7, 1, v4"); a("v_lshlrev_b32 v7, 1, v7")
    a("s_mul_i32 s47, s46, 6")
    for tt in range(3):
        a(f"v_add_u32 v8, s47, v6"); a(f"v_add_u32 v8, {2*tt}, v8"); a("v_xor_b32 v8, v8, v7")
        a(f"v_lshl_add_u32 v{18+tt}, v8, 4, v5")
    ACC = 32
    FA = [128, 168]
    def accr(m, tt, j): return ACC + ((m*3 + tt)*4 + j)*4
    lg = Trk(a, "lgkmcnt")
    def set_slot(slot):
        sb = slot * G1_SLOT
        if sb == 0:
            for i in range(5): a(f"v_mov_b32 v{22+i}, v{16+i}")
        else:
            for i in range(5): a(f"v_add_u32 v{22+i}, {sb}, v{16+i}")
    def reads(s2, st):
        b = FA[st]
        out = []
        for j in range(4):
            out.append((f"ds_read_b128 {vr(b+24+4*j,4)}, v{22+s2} offset:{2048*j}", vl(b+24+4*j,4)))
        for m in range(2):
            for tt in range(3):
                r = b + (m*3+tt)*4
                for hf in range(2):
                    out.append((f"ds_read_b64_tr_b16 {vr(r+2*hf,2)}, v{24+tt} offset:{m*12288 + s2*6144 + hf*768}", vl(r+2*hf,2)))
        return out
    def mfmas(st, first):
        b = FA[st]
        out = []
        for m in range(2):
            for tt in range(3):
                for j in range(4):
                    c = "0" if first else vr(accr(m,tt,j),4)
                    out.append((f"v_mfma_f32_16x16x32_bf16 {vr(accr(m,tt,j),4)}, {vr(b+(m*3+tt)*4,4)}, {vr(b+24+4*j,4)}, {c}", vl(b+(m*3+tt)*4,4) + vl(b+24+4*j,4)))
        return out
    def interleave(mf, rd):
        ri = 0
        for n, (txt, deps) in enumerate(mf):
            lg.need(deps)
            a(txt)
            if ri < len(rd) and n >= 1:
                a(rd[ri][0]); lg.issue(rd[ri][1]); ri += 1
        while ri < len(rd):
            a(rd[ri][0]); lg.issue(rd[ri][1]); ri += 1
    NST = 8
    a(f"s_waitcnt vmcnt({10*(G1_NS-1)})")
    a("s_barrier")
    stp.mark()
    set_slot(0)
    for (t, r) in reads(0, 0): a(t); lg.issue(r)
    for s in range(NST):
        interleave(mfmas(0, s == 0), reads(1, 1))
        if s + 1 < NST:
            n_after = 1 if s + 2 < NST else 0
            lg.q = []
            a(f"s_waitcnt vmcnt({10*n_after}) lgkmcnt(0)")
            a("s_barrier")
            if s + G1_NS < NST: dma_stage(s + G1_NS, s % G1_NS)
            set_slot((s + 1) % G1_NS)
            interleave(mfmas(1, False), reads(0, 0))
        else:
            interleave(mfmas(1, False), [])
    stp.mark()
    a(f"s_mov_b32 s48, {LOG2E ^ 0x80000000:#x}")
    a("s_lshl_b32 s49, s21, 3"); a("s_lshl_b32 s50, s45, 2"); a("s_add_u32 s49, s49, s50")
    a("s_mul_i32 s49, s49, 43"); a("s_add_u32 s49, s49, s23"); a("s_lshl_b32 s49, s49, 10")
    a("v_lshlrev_b32 v3, 4, v1")
    P = 128
    T = 176
    for j in range(4):
        for tt in range(3):
            g = accr(0, tt, j); u = accr(1, tt, j)
            if ROUND_GLU:
                for pr in range(2):
                    a(f"v_cvt_pk_bf16_f32 v{T+pr}, v{g+2*pr}, v{g+2*pr+1}")
                    a(f"v_cvt_pk_bf16_f32 v{T+2+pr}, v{u+2*pr}, v{u+2*pr+1}")
                for pr in range(2):
                    a(f"v_lshlrev_b32 v{g+2*pr}, 16, v{T+pr}"); a(f"v_and_b32 v{g+2*pr+1}, 0xffff0000, v{T+pr}")
                    a(f"v_lshlrev_b32 v{u+2*pr}, 16, v{T+2+pr}"); a(f"v_and_b32 v{u+2*pr+1}, 0xffff0000, v{T+2+pr}")
            for i in range(4): a(f"v_mul_f32 v{g+i}, s48, v{g+i}")
            for i in range(4): a(f"v_exp_f32 v{g+i}, v{g+i}")
            for i in range(4): a(f"v_add_f32 v{g+i}, 1.0, v{g+i}")
            for i in range(4): a(f"v_rcp_f32 v{g+i}, v{g+i}")
            if ROUND_GLU:
                for pr in range(2):
                    a(f"v_cvt_pk_bf16_f32 v{T+pr}, v{g+2*pr}, v{g+2*pr+1}")
                for pr in range(2):
                    a(f"v_lshlrev_b32 v{g+2*pr}, 16, v{T+pr}"); a(f"v_and_b32 v{g+2*pr+1}, 0xffff0000, v{T+pr}")
            for i in range(4): a(f"v_mul_f32 v{g+i}, v{g+i}, v{u+i}")
            for pr in range(2):
                a(f"v_cvt_pk_bf16_f32 v{P+j*6+tt*2+pr}, v{g+2*pr}, v{g+2*pr+1}")
    a("s_cmp_eq_u32 s46, 0")
    a("s_cbranch_scc0 G1_FH1")
    for j in range(4):
        b = P + j*6
        a(f"s_add_u32 s50, s49, {j*43*1024}")
        a(f"buffer_store_dwordx4 {vr(b,4)}, v3, s[36:39], s50 offen")
        a(f"buffer_store_dwordx2 {vr(b+4,2)}, v3, s[36:39], s50 offen offset:1024")
    a("s_branch G1_DONE")
    a.label("G1_FH1")
    for j in range(4):
        b = P + j*6
        a(f"s_add_u32 s50, s49, {j*43*1024}")
        a(f"buffer_store_dwordx2 {vr(b,2)}, v3, s[36:39], s50 offen offset:1032")
        a(f"buffer_store_dwordx4 {vr(b+2,4)}, v3, s[36:39], s50 offen offset:2048")
    a.label("G1_DONE")
    a("s_waitcnt vmcnt(0)")
    stp.mark()
    stp.flush(16, 18)
    a.label("G1_END")
    a("s_endpgm")
    return kernel_head(name) + a.finish() + kernel_desc(name, 208)
```

```python
from common import *
G2_NS = 7
G2_WRING = G2_NS * 4096
G2_LDS = 4 * G2_WRING + 0

def gen_gemm2(name="gemm2_kernel"):
    a = Asm()
    stp = Stamps(a, 3)
    a("s_cmp_ge_u32 s2, 256")
    a("s_cbranch_scc1 G2_END")
    stp.mark()
    a(f"s_load_dwordx2 s[4:5], s[0:1], {KA['wd']}")
    a(f"s_load_dwordx2 s[6:7], s[0:1], {KA['x']}")
    a(f"s_load_dwordx2 s[8:9], s[0:1], {KA['out']}")
    a(f"s_load_dwordx2 s[16:17], s[0:1], {KA['ws']}")
    a("v_and_b32 v1, 63, v0")
    a("v_lshrrev_b32 v2, 6, v0")
    a("s_nop 0")
    a("v_readfirstlane_b32 s18, v2")
    a("s_and_b32 s19, s2, 7"); a("s_lshr_b32 s20, s2, 3")
    a("s_lshl_b32 s21, s19, 2"); a("s_lshr_b32 s22, s20, 3"); a("s_add_u32 s21, s21, s22")
    a("s_and_b32 s22, s20, 7")
    a("s_waitcnt lgkmcnt(0)")
    srd(a, 24, 4, F * D * 2)
    srd(a, 28, 16, HF_BYTES, WS_HF)
    srd(a, 32, 6, L * D * 2)
    srd(a, 36, 8, L * D * 2)
    srd(a, 40, 16, 2 << 20, WS_AT)
    a("s_mul_i32 s23, s18, 11")
    a("s_lshl_b32 s44, s21, 2"); a("s_mul_i32 s44, s44, 43"); a("s_add_u32 s44, s44, s23"); a("s_lshl_b32 s44, s44, 10")
    a("v_lshlrev_b32 v3, 4, v1")
    a("v_lshrrev_b32 v4, 3, v1"); a("v_and_b32 v5, 7, v1"); a("v_bfe_u32 v6, v4, 1, 2"); a("v_lshlrev_b32 v6, 1, v6")
    a("v_xor_b32 v5, v5, v6"); a("v_lshlrev_b32 v4, 10, v4"); a("v_lshl_add_u32 v4, v5, 4, v4")
    a("s_lshl_b32 s45, s23, 15"); a("s_lshl_b32 s46, s22, 7"); a("s_add_u32 s45, s45, s46")
    a(f"s_mul_i32 s46, s18, {G2_WRING}")
    NSTEP = 11
    AR = 80
    def loads(step):
        slot = step % G2_NS
        for j in range(4):
            if step == 10:
                a(f"s_add_u32 s47, s44, {j*43*1024 + step*1024}")
                a("s_cmp_eq_u32 s18, 3")
                a(f"s_cselect_b32 s47, {HF_BYTES}, s47")
            else:
                a(f"s_add_u32 s47, s44, {j*43*1024 + step*1024}")
            a(f"buffer_load_dwordx4 {vr(AR + slot*16 + 4*j, 4)}, v3, s[28:31], s47 offen")
        for t in range(4):
            a(f"s_add_u32 m0, s46, {slot*4096 + t*1024}")
            a(f"s_add_u32 s47, s45, {step*32768 + t*8192}")
            a(f"buffer_load_dwordx4 v4, s[24:27], s47 offen lds")
    for s in range(G2_NS): loads(s)
    a("v_and_b32 v5, 15, v1"); a("v_lshrrev_b32 v6, 4, v1")
    a("v_lshrrev_b32 v7, 2, v5"); a("v_lshl_add_u32 v7, v6, 2, v7")
    a("v_bfe_u32 v8, v7, 1, 2"); a("v_lshlrev_b32 v8, 5, v8"); a("v_lshl_add_u32 v8, v7, 7, v8")
    a("v_bfe_u32 v9, v5, 1, 1"); a("v_lshl_add_u32 v8, v9, 4, v8")
    a("v_and_b32 v9, 1, v5"); a("v_lshl_add_u32 v8, v9, 3, v8")
    a("v_add_u32 v8, s46, v8")
    for nt in range(4):
        a(f"v_xor_b32 v{10+nt}, {nt<<5}, v8")
    ACC = 16
    BF = [192, 208]
    lg = Trk(a, "lgkmcnt")
    def breads(step, st):
        slot = step % G2_NS
        out = []
        for nt in range(4):
            for hf in range(2):
                r = BF[st] + 4*nt + 2*hf
                out.append((f"ds_read_b64_tr_b16 {vr(r,2)}, v{10+nt} offset:{slot*4096 + hf*2048}", vl(r,2)))
        return out
    issued = G2_NS
    def wait_step(step):
        n_after = (issued - 1 - step) * 8
        a(f"s_waitcnt vmcnt({n_after})")
    wait_step(0)
    stp.mark()
    for (t, r) in breads(0, 0): a(t); lg.issue(r)
    for step in range(NSTEP):
        st = step & 1
        slot = step % G2_NS
        rd = []
        if step + 1 < NSTEP:
            wait_step(step + 1)
            rd = breads(step + 1, st ^ 1)
        ri = 0; n = 0
        for j in range(4):
            for nt in range(4):
                ar = AR + slot*16 + 4*j; br = BF[st] + 4*nt
                lg.need(vl(br, 4))
                c = "0" if step == 0 else vr(ACC + (j*4+nt)*4, 4)
                a(f"v_mfma_f32_16x16x32_bf16 {vr(ACC + (j*4+nt)*4, 4)}, {vr(ar,4)}, {vr(br,4)}, {c}")
                n += 1
                if ri < len(rd) and n >= 2:
                    a(rd[ri][0]); lg.issue(rd[ri][1]); ri += 1
        while ri < len(rd):
            a(rd[ri][0]); lg.issue(rd[ri][1]); ri += 1
        if issued < NSTEP:
            loads(issued); issued += 1
    stp.mark()
    a("s_lshl_b32 s47, s21, 3"); a("s_lshl_b32 s48, s18, 1"); a("s_add_u32 s47, s47, s48")
    a("s_lshl_b32 s47, s47, 13"); a("s_lshl_b32 s48, s22, 10"); a("s_add_u32 s47, s47, s48")
    a("v_lshrrev_b32 v7, 1, v6"); a("v_lshlrev_b32 v7, 13, v7")
    a("v_lshl_add_u32 v7, v5, 4, v7"); a("v_and_b32 v8, 1, v6"); a("v_lshl_add_u32 v7, v8, 3, v7")
    for nt in range(4):
        a(f"buffer_load_dwordx2 {vr(80+2*nt,2)}, v7, s[40:43], s47 offen offset:{nt*256}")
    a("s_lshl_b32 s48, s21, 16"); a("s_lshl_b32 s49, s18, 14"); a("s_add_u32 s48, s48, s49"); a("s_lshl_b32 s49, s22, 7"); a("s_add_u32 s48, s48, s49")
    a("v_lshrrev_b32 v8, 2, v1"); a("v_lshlrev_b32 v8, 10, v8"); a("v_and_b32 v9, 3, v1"); a("v_lshl_add_u32 v8, v9, 5, v8")
    a(f"buffer_load_dwordx4 v[88:91], v8, s[32:35], s48 offen")
    a(f"buffer_load_dwordx4 v[92:95], v8, s[32:35], s48 offen offset:16")
    a("s_waitcnt lgkmcnt(0)")
    a("s_barrier")
    a("s_lshl_b32 s49, s18, 12")
    a("v_add_u32 v9, s49, v3")
    for j in range(4):
        for nt in range(4):
            a(f"ds_write_b128 v9, {vr(ACC + (j*4+nt)*4, 4)} offset:{j*16384 + nt*1024}")
    a("s_waitcnt lgkmcnt(0)")
    a("s_barrier")
    a("s_lshl_b32 s49, s18, 14")
    a("v_add_u32 v9, s49, v3")
    for src in range(4):
        for nt in range(4):
            a(f"ds_read_b128 {vr(96 + (src*4+nt)*4, 4)}, v9 offset:{src*4096 + nt*1024}")
    a("s_waitcnt lgkmcnt(0)")
    for nt in range(4):
        for i in range(4):
            r = 96 + nt*4 + i
            a(f"v_add_f32 v{r}, v{r}, v{r+16}"); a(f"v_add_f32 v{r+32}, v{r+32}, v{r+48}"); a(f"v_add_f32 v{r}, v{r}, v{r+32}")
    a("s_waitcnt vmcnt(2)")
    a("s_mov_b32 s50, 0x05040100"); a("s_mov_b32 s51, 0x07060302"); a("s_mov_b32 s52, 0x07060100")
    a(f"s_mul_i32 s49, s18, 4352"); a(f"s_add_u32 s49, s49, 65536")
    a("v_mul_u32_u24 v9, 1088, v6"); a("v_lshl_add_u32 v9, v5, 2, v9"); a("v_add_u32 v9, s49, v9")
    for nt in range(4):
        r = 96 + nt*4
        a(f"v_cvt_pk_bf16_f32 v{r}, v{r}, v{r+1}"); a(f"v_cvt_pk_bf16_f32 v{r+2}, v{r+2}, v{r+3}")
        at0 = 80 + 2*nt
        a(f"v_perm_b32 v{112+0}, v{r}, v{at0}, s50")
        a(f"v_perm_b32 v{112+1}, v{r}, v{at0}, s51")
        a(f"v_perm_b32 v{112+2}, v{r+2}, v{at0+1}, s50")
        a(f"v_perm_b32 v{112+3}, v{r+2}, v{at0+1}, s51")
        for i in range(4):
            a(f"ds_write_b32 v9, v{112+i} offset:{i*272 + nt*64}")
    a("v_lshrrev_b32 v9, 2, v1"); a("v_mul_u32_u24 v9, 272, v9"); a("v_and_b32 v10, 3, v1"); a("v_lshl_add_u32 v9, v10, 6, v9"); a("v_add_u32 v9, s49, v9")
    a("s_waitcnt lgkmcnt(0)")
    for q in range(4):
        a(f"ds_read_b128 {vr(96+4*q,4)}, v9 offset:{16*q}")
    a("s_waitcnt vmcnt(0) lgkmcnt(0)")
    for q in range(8):
        e0 = 96 + 2*q; e1 = e0 + 1; xr = 88 + q
        a(f"v_lshlrev_b32 v112, 16, v{xr}"); a(f"v_and_b32 v113, 0xffff0000, v{xr}")
        a(f"v_lshlrev_b32 v114, 16, v{e0}"); a(f"v_lshlrev_b32 v115, 16, v{e1}")
        a(f"v_add_f32 v112, v112, v114"); a(f"v_add_f32 v113, v113, v115")
        a(f"v_cvt_pk_bf16_f32 v112, v112, v113")
        a(f"v_lshlrev_b32 v113, 16, v112"); a(f"v_and_b32 v112, 0xffff0000, v112")
        a(f"v_and_b32 v114, 0xffff0000, v{e0}"); a(f"v_and_b32 v115, 0xffff0000, v{e1}")
        a(f"v_add_f32 v113, v113, v114"); a(f"v_add_f32 v112, v112, v115")
        a(f"v_cvt_pk_bf16_f32 v{116+q}, v113, v112")
    a(f"buffer_store_dwordx4 v[116:119], v8, s[36:39], s48 offen")
    a(f"buffer_store_dwordx4 v[120:123], v8, s[36:39], s48 offen offset:16")
    a("s_waitcnt vmcnt(0)")
    stp.mark()
    stp.flush(16, 18)
    a.label("G2_END")
    a("s_endpgm")
    return kernel_head(name) + a.finish() + kernel_desc(name, 224)
```

```python
from common import *

def gen_ln(name="ln_kernel"):
    a = Asm()
    a("s_cmp_ge_u32 s2, 256")
    a("s_cbranch_scc1 LN_END")
    a(f"s_load_dwordx2 s[4:5], s[0:1], {KA['x']}")
    a(f"s_load_dwordx2 s[6:7], s[0:1], {KA['ws']}")
    a("v_and_b32 v1, 63, v0")
    a("v_lshrrev_b32 v2, 6, v0")
    a("s_waitcnt lgkmcnt(0)")
    srd(a, 8, 4, L * D * 2)
    srd(a, 12, 6, 2 << 20, WS_XN)
    srd(a, 16, 6, 2 << 20, WS_XT)
    a("s_lshl_b32 s3, s2, 13")
    a("v_lshlrev_b32 v3, 11, v2")
    a("v_lshl_add_u32 v3, v1, 4, v3")
    a("v_add_u32 v3, s3, v3")
    a("buffer_load_dwordx4 v[4:7], v3, s[8:11], 0 offen")
    a("buffer_load_dwordx4 v[8:11], v3, s[8:11], 0 offen offset:1024")
    a("s_waitcnt vmcnt(0)")
    for r in range(2):
        for i in range(4):
            src = 4 + 4 * r + i
            a(f"v_lshlrev_b32 v{12 + 8*r + 2*i}, 16, v{src}")
            a(f"v_and_b32 v{13 + 8*r + 2*i}, 0xffff0000, v{src}")
    for r in range(2):
        b = 12 + 8 * r
        a(f"v_add_f32 v{28+r}, v{b}, v{b+1}")
        for i in range(2, 8):
            a(f"v_add_f32 v{28+r}, v{28+r}, v{b+i}")
    wave_sum(a, [28, 29], [20, 21])
    a("s_mov_b32 s24, 0x3b000000")
    for r in range(2):
        a(f"v_mov_b32 v{28+r}, s{20+r}")
        a(f"v_mul_f32 v{28+r}, s24, v{28+r}")
    for r in range(2):
        b = 12 + 8 * r
        for i in range(8):
            a(f"v_sub_f32 v32, v{b+i}, v{28+r}")
            if i == 0: a(f"v_mul_f32 v{30+r}, v32, v32")
            else: a(f"v_fmac_f32 v{30+r}, v32, v32")
    wave_sum(a, [30, 31], [22, 23])
    a(f"s_mov_b32 s25, {EPS}")
    for r in range(2):
        a(f"v_mov_b32 v{30+r}, s{22+r}")
        a(f"v_mul_f32 v{30+r}, s24, v{30+r}")
        round_bf16(a, 30 + r, 30 + r)
        a(f"v_add_f32 v{30+r}, s25, v{30+r}")
        round_bf16(a, 30 + r, 30 + r)
        a(f"v_sqrt_f32 v{30+r}, v{30+r}")
        round_bf16(a, 30 + r, 30 + r)
        a(f"v_rcp_f32 v{30+r}, v{30+r}")
        round_bf16(a, 28 + r, 28 + r)
    for r in range(2):
        b = 12 + 8 * r
        for i in range(4):
            a(f"v_sub_f32 v{b+2*i}, v{b+2*i}, v{28+r}")
            a(f"v_sub_f32 v{b+2*i+1}, v{b+2*i+1}, v{28+r}")
            a(f"v_cvt_pk_bf16_f32 v32, v{b+2*i}, v{b+2*i+1}")
            a(f"v_lshlrev_b32 v33, 16, v32")
            a(f"v_and_b32 v34, 0xffff0000, v32")
            a(f"v_mul_f32 v33, v33, v{30+r}")
            a(f"v_mul_f32 v34, v34, v{30+r}")
            a(f"v_cvt_pk_bf16_f32 v{4+4*r+i}, v33, v34")
    a("buffer_store_dwordx4 v[4:7], v3, s[12:15], 0 offen")
    a("buffer_store_dwordx4 v[8:11], v3, s[12:15], 0 offen offset:1024")
    a("v_lshlrev_b32 v35, 11, v2")
    a("v_lshl_add_u32 v35, v1, 4, v35")
    a("ds_write_b128 v35, v[4:7]")
    a("ds_write_b128 v35, v[8:11] offset:1024")
    a("s_waitcnt lgkmcnt(0)")
    a("s_barrier")
    a("v_lshlrev_b32 v36, 2, v0")
    for r in range(8):
        a(f"ds_read_b32 v{40+r}, v36 offset:{1024*r}")
    a("s_mov_b32 s26, 0x05040100")
    a("s_mov_b32 s27, 0x07060302")
    a("s_waitcnt lgkmcnt(0)")
    for i in range(4):
        a(f"v_perm_b32 v{48+i}, v{41+2*i}, v{40+2*i}, s26")
        a(f"v_perm_b32 v{52+i}, v{41+2*i}, v{40+2*i}, s27")
    a("s_lshl_b32 s3, s2, 13")
    a("v_lshlrev_b32 v37, 5, v0")
    a("v_add_u32 v37, s3, v37")
    a("buffer_store_dwordx4 v[48:51], v37, s[16:19], 0 offen")
    a("buffer_store_dwordx4 v[52:55], v37, s[16:19], 0 offen offset:16")
    a("s_waitcnt vmcnt(0)")
    a.label("LN_END")
    a("s_endpgm")
    return kernel_head(name) + a.finish() + kernel_desc(name, 64)
```

```python
from common import *

S_U0 = 256; S_USTR = 4608
S_KW = 9472; S_KCH = 16640; S_KCP = 4160
S_EX = 42752
S_TAB = 65024
S_GEN = 71680; S_GW = 17408; S_PITCH = 272
S_LDS = S_GEN + 4 * S_GW

def cmul(a, d, z, w):
    return [f"v_pk_mul_f32 v[{d}:{d+1}], v[{z}:{z+1}], v[{w}:{w+1}] op_sel:[0,0] op_sel_hi:[1,0]",
            f"v_pk_fma_f32 v[{d}:{d+1}], v[{z}:{z+1}], v[{w}:{w+1}], v[{d}:{d+1}] op_sel:[1,1,0] op_sel_hi:[0,1,1] neg_lo:[0,1,0]"]

def gen_ssm(name="ssm_kernel"):
    a = Asm()
    a("s_cmp_ge_u32 s2, 256")
    a("s_cbranch_scc1 SSM_END")
    import common
    stp = Stamps(a, 1)
    stp.mark()
    a("s_and_b32 s3, s2, 7"); a("s_lshl_b32 s3, s3, 5"); a("s_lshr_b32 s2, s2, 3"); a("s_add_u32 s2, s2, s3")
    a(f"s_load_dwordx4 s[4:7], s[0:1], {KA['lar']}")
    a(f"s_load_dwordx4 s[8:11], s[0:1], {KA['cr']}")
    a(f"s_load_dwordx4 s[12:15], s[0:1], {KA['ldt']}")
    a(f"s_load_dwordx2 s[16:17], s[0:1], {KA['ws']}")
    a("v_and_b32 v1, 63, v0")
    a("v_lshrrev_b32 v2, 6, v0")
    a("s_nop 0")
    a("v_readfirstlane_b32 s18, v2")
    a("s_lshr_b32 s19, s18, 1")
    a("s_and_b32 s20, s18, 1")
    a("s_waitcnt lgkmcnt(0)")
    a("s_lshl_b32 s21, s2, 2")
    a("s_add_u32 s12, s12, s21"); a("s_addc_u32 s13, s13, 0")
    a("s_add_u32 s14, s14, s21"); a("s_addc_u32 s15, s15, 0")
    a("s_load_dword s22, s[12:13], 0")
    a("s_load_dword s23, s[14:15], 0")
    srd(a, 24, 4, D * NM * 2); srd(a, 28, 6, D * NM * 2); srd(a, 32, 8, D * NM * 2); srd(a, 36, 10, D * NM * 2)
    srd(a, 40, 16, 2 << 20, WS_XT)
    srd(a, 44, 16, 2 << 20, WS_AT)
    a("s_lshl_b32 s21, s2, 9")
    a("s_lshl_b32 s48, s18, 7")
    a("s_add_u32 s21, s21, s48")
    a("v_lshlrev_b32 v3, 1, v1")
    a("v_add_u32 v3, s21, v3")
    a("buffer_load_ushort v4, v3, s[24:27], 0 offen")
    a("buffer_load_ushort v5, v3, s[28:31], 0 offen")
    a("buffer_load_ushort v6, v3, s[32:35], 0 offen")
    a("buffer_load_ushort v7, v3, s[36:39], 0 offen")
    a("s_lshl_b32 s48, s2, 1")
    a("s_add_u32 s48, s48, s19")
    a("s_lshl_b32 s48, s48, 4")
    a("s_lshl_b32 s49, s20, 20")
    a("s_add_u32 s48, s48, s49")
    a("v_lshlrev_b32 v8, 13, v1")
    a(f"s_mul_i32 s49, s19, {S_USTR}")
    a("s_lshl_b32 s50, s20, 11")
    a("s_add_u32 s49, s49, s50")
    a(f"s_add_u32 m0, s49, {S_U0 + 512}")
    a("s_nop 0")
    a("buffer_load_dwordx4 v8, s[40:43], s48 offen lds")
    a("s_add_u32 m0, m0, 1024")
    a(f"s_add_u32 s48, s48, {64 * 8192}")
    a("buffer_load_dwordx4 v8, s[40:43], s48 offen lds")
    a("v_mov_b32 v12, 0"); a("v_mov_b32 v13, 0"); a("v_mov_b32 v14, 0"); a("v_mov_b32 v15, 0")
    a("s_cmp_lg_u32 s18, 0")
    a("s_cbranch_scc1 SSM_NZ0")
    a("v_lshrrev_b32 v9, 5, v1")
    a(f"v_mul_u32_u24 v9, {S_USTR}, v9")
    a("v_and_b32 v10, 31, v1")
    a("v_lshl_add_u32 v9, v10, 4, v9")
    a(f"ds_write_b128 v9, v[12:15] offset:{S_U0}")
    a.label("SSM_NZ0")
    a("s_cmp_lg_u32 s18, 1")
    a("s_cbranch_scc1 SSM_NZ1")
    a("v_bfe_u32 v9, v1, 3, 1")
    a(f"v_mul_u32_u24 v9, {S_KCH}, v9")
    a("v_bfe_u32 v10, v1, 1, 2")
    a(f"v_mul_u32_u24 v10, {S_KCP}, v10")
    a("v_add_u32 v9, v9, v10")
    a("v_and_b32 v10, 1, v1")
    a("v_lshl_add_u32 v9, v10, 4, v9")
    a(f"ds_write_b128 v9, v[12:15] offset:{S_KW + 4096}")
    a.label("SSM_NZ1")
    a("s_waitcnt lgkmcnt(0)")
    stp.mark()
    a("s_lshl_b32 s48, s22, 16"); a("s_and_b32 s49, s22, 0xffff0000")
    a("s_lshl_b32 s56, s23, 16"); a("s_and_b32 s57, s23, 0xffff0000")
    a("s_cmp_eq_u32 s19, 0"); a("s_cselect_b32 s22, s48, s49")
    a("s_cselect_b32 s23, s56, s57")
    a(f"s_mov_b32 s51, {LOG2E}")
    a(f"s_mov_b32 s52, {INV2PI}")
    a("v_mov_b32 v9, s22")
    a("v_mul_f32 v9, s51, v9")
    a("v_exp_f32 v9, v9")
    round_bf16(a, 9, 9)
    a("s_waitcnt vmcnt(2)")
    a("v_lshlrev_b32 v4, 16, v4"); a("v_lshlrev_b32 v5, 16, v5"); a("v_lshlrev_b32 v6, 16, v6"); a("v_lshlrev_b32 v7, 16, v7")
    stp.mark()
    a("v_mul_f32 v4, s51, v4")
    a("v_exp_f32 v4, v4")
    round_bf16(a, 4, 4)
    a("v_mul_f32 v4, v4, v9")
    a("v_mul_f32 v4, s51, v4")
    a("v_mul_f32 v5, v5, v9")
    a("v_mul_f32 v5, s52, v5")
    a("v_add_f32 v9, v9, v9")
    a("v_mul_f32 v16, v6, v9"); a("v_mul_f32 v17, v7, v9")
    for (dst, mult) in ((18, 1.0), (20, 8.0), (22, 128.0)):
        import struct
        bits = struct.unpack("<I", struct.pack("<f", mult))[0]
        a(f"v_mul_f32 v10, {bits:#x}, v4")
        a(f"v_mul_f32 v11, {bits:#x}, v5")
        a("v_exp_f32 v10, -v10")
        a("v_fract_f32 v11, v11")
        a(f"v_cos_f32 v{dst}, v11")
        a(f"v_sin_f32 v{dst+1}, v11")
        a(f"v_mul_f32 v{dst}, v{dst}, v10")
        a(f"v_mul_f32 v{dst+1}, v{dst+1}, v10")
    for s in cmul(a, 24, 18, 18): a(s)
    for s in cmul(a, 26, 24, 24): a(s)
    a(f"s_mul_i32 s48, s18, {S_GW}")
    a(f"s_add_u32 s48, s48, {S_GEN}")
    a("v_lshlrev_b32 v28, 2, v1")
    a("v_add_u32 v28, s48, v28")
    def emit_row(pair, row, neg_im=False, tmp=None):
        t = tmp
        n = "-" if neg_im else ""
        return [f"v_cvt_pk_bf16_f32 v{t}, v{pair}, {n}v{pair+1}", f"ds_write_b32 v28, v{t} offset:{row * S_PITCH}"]
    streams = []
    main_rows = {0: 0, 1: 8, 2: 16, 3: 20, 4: 24, 5: 26, 6: 28, 7: 30}
    for h in range(8, 17): main_rows[h] = 32 + (h - 8)
    sA = []
    sA += ["v_mov_b32 v34, 0x3f80", f"ds_write_b32 v28, v34 offset:0"]
    def Mreg(h): return 22 if h == 1 else (40 + 2 * h if h <= 7 else 30 + 2 * (h & 1))
    sA += emit_row(22, 8, tmp=34)
    for h in range(2, 17):
        sA += cmul(a, Mreg(h), Mreg(h - 1), 22)
        sA += emit_row(Mreg(h), main_rows[h], tmp=34)
    sB = []
    sB += emit_row(16, 48, True, tmp=35)
    prev = 16
    for l in range(1, 16):
        d = 60 + 2 * (l & 1)
        sB += cmul(a, d, prev, 20)
        sB += emit_row(d, 48 + l, True, tmp=35)
        prev = d
    sC = []
    sC += emit_row(18, 1, tmp=36)
    sC += emit_row(24, 2, tmp=36)
    prev = 24
    for r in range(3, 8):
        d = 64 + 2 * (r & 1)
        sC += cmul(a, d, prev, 18)
        sC += emit_row(d, r, tmp=36)
        prev = d
    prev = 22
    for r in range(1, 8):
        d = 64 + 2 * (r & 1)
        sC += cmul(a, d, prev, 18)
        sC += emit_row(d, 8 + r, tmp=36)
        prev = d
    sD = []
    for h, row0 in ((2, 16), (3, 20)):
        prev = Mreg(h)
        for r in range(1, 4):
            d = 68 + 2 * (r & 1)
            sD += cmul(a, d, prev, 24)
            sD += emit_row(d, row0 + r, tmp=37)
            prev = d
    for h in range(4, 8):
        d = 68 + 2 * (h & 1)
        sD += cmul(a, d, Mreg(h), 26)
        sD += emit_row(d, main_rows[h] + 1, tmp=37)
    posM7 = 2 + 2 + 4 * 6
    ia = ib = ic = idd = 0
    while ia < len(sA) or ib < len(sB) or ic < len(sC) or idd < len(sD):
        if ia < len(sA): a(sA[ia]); ia += 1
        if ib < len(sB): a(sB[ib]); ib += 1
        if ic < len(sC): a(sC[ic]); ic += 1
        elif ia >= posM7 and idd < len(sD): a(sD[idd]); idd += 1
        if ia >= len(sA) and ib >= len(sB) and ic >= len(sC) and idd < len(sD):
            a(sD[idd]); idd += 1
    stp.mark()
    a("v_and_b32 v29, 15, v1")
    a(f"v_mul_u32_u24 v29, {S_PITCH}, v29")
    a("v_lshrrev_b32 v30, 4, v1")
    a("v_lshl_add_u32 v29, v30, 4, v29")
    a("v_add_u32 v29, s48, v29")
    a("s_waitcnt lgkmcnt(0)")
    lg = Trk(a, "lgkmcnt")
    for ks in range(4):
        a(f"ds_read_b128 {vr(72+4*ks,4)}, v29 offset:{48*S_PITCH + 64*ks}"); lg.issue(vl(72+4*ks,4))
    for tt in range(3):
        for ks in range(4):
            r = 88 + 16*tt + 4*ks
            a(f"ds_read_b128 {vr(r,4)}, v29 offset:{16*tt*S_PITCH + 64*ks}"); lg.issue(vl(r,4))
    for tt in range(3):
        for ks in range(4):
            r = 88 + 16*tt + 4*ks
            lg.need(vl(r,4) + vl(72+4*ks,4))
            c = "0" if ks == 0 else vr(136+4*tt,4)
            a(f"v_mfma_f32_16x16x32_bf16 {vr(136+4*tt,4)}, {vr(r,4)}, {vr(72+4*ks,4)}, {c}")
    stp.mark()
    a(f"s_mul_i32 s48, s19, 3072")
    a(f"s_add_u32 s48, s48, {S_EX}")
    a("s_mul_i32 s49, s20, 1536")
    a("s_add_u32 s50, s48, s49")
    a("s_xor_b32 s53, s20, 1")
    a("s_mul_i32 s53, s53, 1536")
    a("s_add_u32 s53, s48, s53")
    a("v_lshlrev_b32 v30, 2, v1")
    a("v_add_u32 v31, s50, v30")
    a("v_add_u32 v32, s53, v30")
    a("v_and_b32 v40, 15, v1"); a("v_lshlrev_b32 v40, 3, v40")
    a("v_lshrrev_b32 v41, 4, v1")
    a("v_lshrrev_b32 v42, 1, v41"); a("v_lshlrev_b32 v42, 7, v42")
    a("v_and_b32 v43, 1, v41"); a("v_lshl_add_u32 v42, v43, 2, v42"); a("v_add_u32 v42, v42, v40")
    a("v_cmp_gt_u32 vcc, 2, v41")
    a("v_lshlrev_b32 v43, 7, v41"); a("v_add_u32 v43, 256, v43")
    a("v_lshlrev_b32 v44, 8, v41")
    a("v_cndmask_b32 v43, v44, v43, vcc"); a("v_add_u32 v43, v43, v40")
    for i, (x, y) in enumerate(((2, 4), (4, 128), (6, 132))):
        a(f"v_mov_b32 v{48+i}, {y}")
        a(f"v_cndmask_b32 v{48+i}, v{48+i}, {x}, vcc") if False else None
    for i, (x, y) in enumerate(((2, 4), (4, 128), (6, 132))):
        a(f"v_mov_b32 v{52+i}, {x}")
        a(f"v_cndmask_b32 v{48+i}, v{48+i}, v{52+i}, vcc")
    a("v_lshlrev_b32 v44, 9, v41"); a("v_add_u32 v44, 1024, v44"); a("v_add_u32 v44, v44, v40")
    a("s_cmp_eq_u32 s20, 0")
    a("s_cbranch_scc0 SSM_HF1")
    def finalize(send, keep, plist):
        for k, r in enumerate(send):
            a(f"ds_write_b32 v31, v{136+r} offset:{256*k}")
        a("s_waitcnt lgkmcnt(0)")
        a("s_barrier")
        for k in range(6):
            a(f"ds_read_b32 v{56+k}, v32 offset:{256*k}")
        for k, code in enumerate(plist):
            for c in code: a(c.replace("PD", f"v{64+k}"))
        a("s_lshl_b32 s49, s19, 1")
        for k in range(6):
            a(f"v_cvt_f32_u32 v{64+k}, v{64+k}")
            a(f"v_lshrrev_b32 v{64+k}, 14, v{64+k}")
            a(f"v_add_u32 v{64+k}, s49, v{64+k}")
        a("s_waitcnt lgkmcnt(0)")
        for k, r in enumerate(keep):
            a(f"v_add_f32 v{56+k}, v{56+k}, v{136+r}")
            a(f"v_cvt_pk_bf16_f32 v{56+k}, v{56+k}, v{56+k}")
        return
    p_hf0 = [[f"v_add_u32 PD, {i}, v42"] for i in range(4)] + [["v_mov_b32 PD, v43"], ["v_add_u32 PD, v43, v48"]]
    finalize(range(6, 12), range(0, 6), p_hf0)
    for k in range(6):
        a(f"ds_write_b16 v{64+k}, v{56+k}")
    a("s_branch SSM_TABDONE")
    a.label("SSM_HF1")
    p_hf1 = [["v_add_u32 PD, v43, v49"], ["v_add_u32 PD, v43, v50"]] + [[f"v_add_u32 PD, {128*i}, v44"] for i in range(4)]
    finalize(range(0, 6), range(6, 12), p_hf1)
    a(f"v_mov_b32 v70, {S_EX + 8192}")
    a(f"s_add_u32 s49, s49, {(0x45000000 >> 14)}")
    for k in range(2, 6):
        a(f"v_cmp_ge_u32 vcc, s49, v{64+k}")
        a(f"v_cndmask_b32 v{64+k}, v70, v{64+k}, vcc")
    for k in range(6):
        a(f"ds_write_b16 v{64+k}, v{56+k}")
    a.label("SSM_TABDONE")
    a("s_waitcnt lgkmcnt(0)")
    a("s_barrier")
    stp.mark()
    a("v_lshlrev_b32 v40, 3, v0")
    a("v_sub_u32 v40, 2047, v40")
    a("v_cvt_f32_i32 v40, v40")
    for e in range(1, 12):
        import struct
        bits = struct.unpack("<I", struct.pack("<f", float(e)))[0]
        a(f"v_subrev_f32 v{40+e}, {bits:#x}, v40")
    for k in range(6):
        a(f"v_cvt_pk_bf16_f32 v{52+k}, |v{40+2*k}|, |v{41+2*k}|")
    for e in range(11):
        sel = "WORD_0" if e % 2 == 0 else "WORD_1"
        a(f"v_lshlrev_b32_sdwa v{60+e}, 2, v{52+e//2} dst_sel:DWORD dst_unused:UNUSED_PAD src0_sel:DWORD src1_sel:{sel}")
    for e in range(11):
        a(f"ds_read_b32 v{72+e}, v{60+e}")
    a("v_cmp_ne_u32 vcc, 255, v0")
    a("s_mov_b32 s54, 0x05040100"); a("s_mov_b32 s55, 0x07060302")
    a("v_lshlrev_b32 v71, 4, v0")
    a("s_waitcnt lgkmcnt(0)")
    for e in (8, 9, 10):
        a(f"v_cndmask_b32 v{72+e}, 0, v{72+e}, vcc")
    for ch in range(2):
        for sg in range(4):
            b = 84 + 16*ch + 4*sg
            for k in range(4):
                a(f"v_perm_b32 v{b+k}, v{72+2*k+sg+1}, v{72+2*k+sg}, s{54+ch}")
            a(f"ds_write_b128 v71, {vr(b,4)} offset:{S_KW + ch*S_KCH + sg*S_KCP}")
    a("s_waitcnt vmcnt(0) lgkmcnt(0)")
    a("s_barrier")
    stp.mark()
    a("v_and_b32 v41, 15, v1")
    a("v_lshrrev_b32 v42, 4, v1")
    a("v_sub_u32 v43, 3, v41"); a("v_and_b32 v43, 3, v43")
    a(f"v_mul_u32_u24 v40, {S_KCP - 2}, v43")
    a("v_lshlrev_b32 v44, 1, v41"); a("v_sub_u32 v40, v40, v44")
    a("v_lshl_add_u32 v40, v42, 4, v40")
    a(f"s_mul_i32 s48, s19, {S_KCH}")
    a("s_lshl_b32 s49, s20, 8")
    a("s_sub_u32 s48, s48, s49")
    a(f"s_add_u32 s48, s48, {S_KW + 2*2031 - 64*63}")
    a("v_add_u32 v40, s48, v40")
    a("v_lshlrev_b32 v45, 5, v41"); a("v_lshl_add_u32 v45, v42, 4, v45")
    a(f"s_mul_i32 s48, s19, {S_USTR}")
    a("s_sub_u32 s48, s48, s49")
    a(f"s_add_u32 s48, s48, {S_U0 + 480 - 448}")
    a("v_add_u32 v45, s48, v45")
    ACC = 48; BF = [80, 112]; AF = 144
    lg = Trk(a, "lgkmcnt")
    def loadB(rr, st):
        for tp in range(8):
            r = BF[st] + 4*tp
            a(f"ds_read_b128 {vr(r,4)}, v45 offset:{64*(8*tp - rr + 7)}"); lg.issue(vl(r,4))
    def loadA(rr, q, slot):
        r = AF + 4*slot
        off = 64*(63 - 8*q - rr)
        a(f"ds_read_b64 {vr(r,2)}, v40 offset:{off}"); lg.issue(vl(r,2))
        a(f"ds_read_b64 {vr(r+2,2)}, v40 offset:{off+8}"); lg.issue(vl(r+2,2))
    seq = [(rr, q) for rr in range(4) for q in range(8)]
    loadA(0, 0, 0); loadA(0, 1, 1)
    loadB(0, 0)
    loadA(0, 2, 2)
    first = [True]*8
    for n, (rr, q) in enumerate(seq):
        slot = n % 4
        st = rr & 1
        if n + 3 < len(seq):
            loadA(seq[n+3][0], seq[n+3][1], (n+3) % 4)
        if q == 2 and rr < 3:
            loadB(rr + 1, st ^ 1)
        ar = AF + 4*slot
        for t in range(q, 8):
            br = BF[st] + 4*(t - q)
            lg.need(vl(ar,4) + vl(br,4))
            c = "0" if first[t] else vr(ACC+4*t,4)
            first[t] = False
            a(f"v_mfma_f32_16x16x32_bf16 {vr(ACC+4*t,4)}, {vr(ar,4)}, {vr(br,4)}, {c}")
    stp.mark()
    a("s_lshl_b32 s48, s18, 12"); a(f"s_add_u32 s48, s48, {S_EX}")
    a("s_xor_b32 s49, s18, 1"); a("s_lshl_b32 s49, s49, 12"); a(f"s_add_u32 s49, s49, {S_EX}")
    a("v_lshlrev_b32 v46, 4, v1")
    a("v_add_u32 v47, s49, v46"); a("v_add_u32 v46, s48, v46")
    a("v_lshlrev_b32 v144, 1, v41"); a("v_lshrrev_b32 v145, 1, v42"); a("v_add_u32 v144, v144, v145")
    a("v_lshlrev_b32 v144, 13, v144")
    a("v_and_b32 v145, 1, v42"); a("v_lshl_add_u32 v144, v145, 3, v144")
    a("s_lshl_b32 s50, s2, 1"); a("s_add_u32 s50, s50, s19"); a("s_lshl_b32 s50, s50, 4")
    a("s_lshl_b32 s53, s20, 20")
    a("s_add_u32 s50, s50, s53")
    a("v_add_u32 v144, s50, v144")
    a("v_lshlrev_b32 v146, 5, v41"); a("v_lshl_add_u32 v146, v42, 3, v146")
    a(f"s_mul_i32 s50, s19, {S_USTR}"); a("s_lshl_b32 s53, s20, 11"); a("s_add_u32 s50, s50, s53")
    a(f"s_add_u32 s50, s50, {S_U0 + 512}")
    a("v_add_u32 v146, s50, v146")
    a("s_cmp_eq_u32 s20, 0")
    a("s_cbranch_scc0 SSM_X1")
    def fin(send, keep):
        for k, t in enumerate(send):
            a(f"ds_write_b128 v46, {vr(ACC+4*t,4)} offset:{1024*k}")
        a("s_waitcnt lgkmcnt(0)")
        a("s_barrier")
        for k in range(4):
            a(f"ds_read_b128 {vr(80+4*k,4)}, v47 offset:{1024*k}")
            a(f"ds_read_b64 {vr(96+2*k,2)}, v146 offset:{512*k}")
        a("s_waitcnt lgkmcnt(0)")
        for k, t in enumerate(keep):
            y = ACC + 4*t
            for i in range(4):
                a(f"v_add_f32 v{y+i}, v{y+i}, v{80+4*k+i}")
            a(f"v_cvt_pk_bf16_f32 v104, v{y}, v{y+1}"); a(f"v_cvt_pk_bf16_f32 v105, v{y+2}, v{y+3}")
            for j in range(2):
                u = 96 + 2*k + j
                a(f"v_lshlrev_b32 v106, 16, v{u}"); a(f"v_and_b32 v107, 0xffff0000, v{u}")
                a(f"v_mul_f32 v106, s23, v106"); a(f"v_mul_f32 v107, s23, v107")
                a(f"v_cvt_pk_bf16_f32 v108, v106, v107")
                a(f"v_lshlrev_b32 v106, 16, v108"); a(f"v_and_b32 v107, 0xffff0000, v108")
                a(f"v_lshlrev_b32 v109, 16, v{104+j}"); a(f"v_and_b32 v110, 0xffff0000, v{104+j}")
                a(f"v_add_f32 v106, v106, v109"); a(f"v_add_f32 v107, v107, v110")
                a(f"v_cvt_pk_bf16_f32 v{112+2*k+j}, v106, v107")
            a(f"s_mov_b32 s53, {k * 32 * 8192}")
            a(f"buffer_store_dwordx2 {vr(112+2*k,2)}, v144, s[44:47], s53 offen")
    fin(range(4, 8), range(0, 4))
    a("s_branch SSM_DONE")
    a.label("SSM_X1")
    fin(range(0, 4), range(4, 8))
    a.label("SSM_DONE")
    a("s_waitcnt vmcnt(0)")
    stp.mark()
    stp.flush(16, 18)
    a.label("SSM_END")
    a("s_endpgm")
    return kernel_head(name) + a.finish() + kernel_desc(name, 168)
```

```python
import sys
from common import *
from k_ln import gen_ln
from k_ssm import gen_ssm, S_LDS
from k_gemm1 import gen_gemm1, G1_LDS
from k_gemm2 import gen_gemm2, G2_LDS
hdr_comment = open("cdna_kernels/" + NAME + ".s.ref").read().split("; Override")[0]
def build(kernels):
    s = hdr_comment
    for (n, g, b, lds, _) in kernels:
        s += f"; @launch kernel={n} grid=({g},1,1) block=({b},1,1) lds={lds}\n"
    s += '.amdgcn_target "amdgcn-amd-amdhsa--gfx950"\n.text\n'
    for k in kernels: s += k[4]
    return s
if __name__ == "__main__":
    import common
    if "--stamp" in sys.argv:
        common.STAMP = True; sys.argv.remove("--stamp")
    ks = [("ln_kernel", 256, 256, 8192, gen_ln()),
          ("ssm_kernel", 256, 256, S_LDS, gen_ssm()),
          ("gemm1_kernel", 256, 256, G1_LDS, gen_gemm1()),
          ("gemm2_kernel", 256, 256, G2_LDS, gen_gemm2())]
    open(sys.argv[1] if len(sys.argv) > 1 else "k.s", "w").write(build(ks))
```

```python
from asmlib import *
NAME = "parallel_sum__ssm_conv_s4d__glu_gated_glu__prompt"
KA = dict(x=0, lar=8, aim=16, cr=24, ci=32, ldt=40, dsk=48, bx=56, wg=64, wu=72, wd=80, out=88, dbg=96, ws=104)
L, D, NM, F = 2048, 512, 128, 1376
WS_XN = 0
WS_XT = 2 << 20
WS_AT = 4 << 20
WS_HF = 6 << 20
HF_BYTES = 128 * 43 * 1024
LOG2E = 0x3fb8aa3b
INV2PI = 0x3e22f983
EPS = 0x3727c5ac

def srd(a, s, ptr, nbytes, add=0):
    if add:
        a(f"s_add_u32 s{s}, s{ptr}, {add}")
        a(f"s_addc_u32 s{s+1}, s{ptr+1}, 0")
    else:
        a(f"s_mov_b32 s{s}, s{ptr}")
        a(f"s_mov_b32 s{s+1}, s{ptr+1}")
    a(f"s_mov_b32 s{s+2}, {nbytes}")
    a(f"s_mov_b32 s{s+3}, 0x20000")

def round_bf16(a, dst, src):
    a(f"v_cvt_pk_bf16_f32 v{dst}, v{src}, v{src}")
    a(f"v_and_b32 v{dst}, 0xffff0000, v{dst}")

def wave_sum(a, regs, tmp_s):
    for pat in ("quad_perm:[1,0,3,2]", "quad_perm:[2,3,0,1]", "row_half_mirror", "row_mirror"):
        for r in regs:
            a(f"v_add_f32_dpp v{r}, v{r}, v{r} {pat} row_mask:0xf bank_mask:0xf")
    for pat, rm in (("row_bcast:15", "0xa"), ("row_bcast:31", "0xc")):
        for r in regs:
            a(f"v_add_f32_dpp v{r}, v{r}, v{r} {pat} row_mask:{rm} bank_mask:0xf")
    for r, s in zip(regs, tmp_s):
        a(f"v_readlane_b32 s{s}, v{r}, 63")

STAMP = False
WS_STAMP = 64 << 20
class Stamps:
    def __init__(self, a, kidx):
        self.a = a; self.n = 0; self.kidx = kidx
    def mark(self):
        import common
        if not common.STAMP: return
        a = self.a
        a("s_waitcnt lgkmcnt(0)")
        a("s_memtime s[78:79]")
        a("s_waitcnt lgkmcnt(0)")
        a(f"s_mov_b32 s{80 + self.n}, s78")
        if self.n == 0:
            a("s_memrealtime s[78:79]"); a("s_waitcnt lgkmcnt(0)"); a("s_mov_b32 s98, s78")
        self.n += 1
    def flush(self, ws_ptr, wave_sgpr, nwaves=4):
        import common
        if not common.STAMP: return
        a = self.a
        a(f"s_add_u32 s76, s{ws_ptr}, {WS_STAMP + self.kidx * (1 << 20)}")
        a(f"s_addc_u32 s77, s{ws_ptr+1}, 0")
        a(f"s_lshl_b32 s75, s2, 3")
        a(f"s_add_u32 s75, s75, s{wave_sgpr}")
        a(f"s_lshl_b32 s75, s75, 6")
        a("s_add_u32 s76, s76, s75"); a("s_addc_u32 s77, s77, 0")
        a("s_memrealtime s[78:79]"); a("s_waitcnt lgkmcnt(0)")
        a("v_mov_b32 v0, 0")
        a("v_mov_b32 v1, s98"); a("global_store_dword v0, v1, s[76:77] offset:56")
        a("v_mov_b32 v1, s78"); a("global_store_dword v0, v1, s[76:77] offset:60")
        for i in range(self.n):
            a(f"v_mov_b32 v1, s{80+i}")
            a(f"global_store_dword v0, v1, s[76:77] offset:{4*i}")
        a("s_waitcnt vmcnt(0)")
```

```python
from common import *
G1_SLOT = 40960
G1_NS = 3
G1_LDS = G1_SLOT * G1_NS
ROUND_GLU = True
EXP = set()

def gen_gemm1(name="gemm1_kernel", src_ws_off=WS_XN):
    a = Asm()
    stp = Stamps(a, 2)
    a("s_cmp_ge_u32 s2, 256")
    a("s_cbranch_scc1 G1_END")
    stp.mark()
    a(f"s_load_dwordx4 s[4:7], s[0:1], {KA['wg']}")
    a(f"s_load_dwordx2 s[16:17], s[0:1], {KA['ws']}")
    a("v_and_b32 v1, 63, v0")
    a("v_lshrrev_b32 v2, 6, v0")
    a("s_nop 0")
    a("v_readfirstlane_b32 s18, v2")
    a("s_and_b32 s19, s2, 7"); a("s_lshr_b32 s20, s2, 3")
    a("s_and_b32 s21, s19, 1"); a("s_lshl_b32 s21, s21, 3"); a("s_and_b32 s22, s20, 7"); a("s_add_u32 s21, s21, s22")
    a("s_lshr_b32 s22, s19, 1"); a("s_lshl_b32 s22, s22, 2"); a("s_lshr_b32 s23, s20, 3"); a("s_add_u32 s22, s22, s23")
    a("s_lshl_b32 s23, s22, 3"); a("s_mul_i32 s23, s23, 21846"); a("s_lshr_b32 s23, s23, 16")
    a("s_waitcnt lgkmcnt(0)")
    srd(a, 24, 4, D * F * 2); srd(a, 28, 6, D * F * 2)
    srd(a, 32, 16, 2 << 20, src_ws_off)
    srd(a, 36, 16, HF_BYTES, WS_HF)
    a("v_lshrrev_b32 v3, 3, v1"); a("v_and_b32 v4, 7, v1"); a("v_lshrrev_b32 v5, 1, v3")
    a("v_xor_b32 v6, v4, v5")
    a("v_xor_b32 v7, 4, v6")
    a("v_lshlrev_b32 v3, 10, v3")
    a("v_lshl_add_u32 v10, v6, 4, v3")
    a("v_lshl_add_u32 v11, v7, 4, v3")
    for t in range(3):
        a(f"v_add_u32 v3, {64*t}, v1")
        a("v_mul_u32_u24 v4, 5462, v3"); a("v_lshrrev_b32 v4, 16, v4")
        a("v_mul_u32_u24 v5, 12, v4"); a("v_sub_u32 v5, v3, v5")
        a("v_bfe_u32 v6, v4, 3, 1"); a("v_lshlrev_b32 v6, 1, v6"); a("v_xor_b32 v5, v5, v6")
        a("v_mul_u32_u24 v4, 2752, v4")
        a(f"v_lshl_add_u32 v{12+t}, v5, 4, v4")
    a("s_lshl_b32 s40, s21, 17"); a("s_lshl_b32 s41, s18, 15"); a("s_add_u32 s40, s40, s41")
    a("s_mul_i32 s41, s18, 44032"); a("s_lshl_b32 s42, s23, 6"); a("s_add_u32 s41, s41, s42")
    a("s_lshl_b32 s42, s18, 12")
    a("s_mul_i32 s43, s18, 3072"); a("s_add_u32 s43, s43, 16384")
    def dma_stage(stage, slot):
        sb = slot * G1_SLOT
        for t in range(4):
            a(f"s_add_u32 m0, s42, {sb + t*1024}")
            a(f"s_add_u32 s44, s40, {t*8192 + stage*128}")
            a(f"buffer_load_dwordx4 v{10 + (t&1)}, s[32:35], s44 offen lds")
        for m in range(2):
            for t in range(3):
                a(f"s_add_u32 m0, s43, {sb + m*12288 + t*1024}")
                if t == 0 and m == 0:
                    a(f"s_add_u32 s44, s41, {stage*64*2752}")
                a(f"buffer_load_dwordx4 v{12+t}, s[{24+4*m}:{27+4*m}], s44 offen lds")
    for s in range(G1_NS): dma_stage(s, s)
    a("s_lshr_b32 s45, s18, 1"); a("s_and_b32 s46, s18, 1")
    a("v_and_b32 v3, 15, v1"); a("v_lshrrev_b32 v4, 4, v1")
    a("v_lshrrev_b32 v5, 1, v3"); a("v_xor_b32 v5, v5, v4"); a("v_lshlrev_b32 v5, 4, v5")
    a("v_lshl_add_u32 v5, v3, 7, v5")
    a("s_lshl_b32 s47, s45, 13")
    a("v_add_u32 v16, s47, v5")
    a("v_xor_b32 v17, 64, v16")
    a("v_lshrrev_b32 v5, 2, v3"); a("v_lshl_add_u32 v5, v4, 3, v5"); a("v_mul_u32_u24 v5, 192, v5")
    a("v_and_b32 v6, 1, v3"); a("v_lshl_add_u32 v5, v6, 3, v5"); a("v_add_u32 v5, 16384, v5")
    a("v_bfe_u32 v6, v3, 1, 1")
    a("v_and_b32 v7, 1, v4"); a("v_lshlrev_b32 v7, 1, v7")
    a("s_mul_i32 s47, s46, 6")
    for tt in range(3):
        a(f"v_add_u32 v8, s47, v6"); a(f"v_add_u32 v8, {2*tt}, v8"); a("v_xor_b32 v8, v8, v7")
        a(f"v_lshl_add_u32 v{18+tt}, v8, 4, v5")
    ACC = 32
    FA = [128, 168]
    def accr(m, tt, j): return ACC + ((m*3 + tt)*4 + j)*4
    lg = Trk(a, "lgkmcnt")
    def set_slot(slot):
        sb = slot * G1_SLOT
        if sb == 0:
            for i in range(5): a(f"v_mov_b32 v{22+i}, v{16+i}")
        else:
            for i in range(5): a(f"v_add_u32 v{22+i}, {sb}, v{16+i}")
    def reads(s2, st):
        b = FA[st]
        out = []
        for j in range(4):
            out.append((f"ds_read_b128 {vr(b+24+4*j,4)}, v{22+s2} offset:{2048*j}", vl(b+24+4*j,4)))
        for m in range(2):
            for tt in range(3):
                r = b + (m*3+tt)*4
                for hf in range(2):
                    out.append((f"ds_read_b64_tr_b16 {vr(r+2*hf,2)}, v{24+tt} offset:{m*12288 + s2*6144 + hf*768}", vl(r+2*hf,2)))
        return out
    def mfmas(st, first):
        b = FA[st]
        out = []
        for m in range(2):
            for tt in range(3):
                for j in range(4):
                    c = "0" if first else vr(accr(m,tt,j),4)
                    out.append((f"v_mfma_f32_16x16x32_bf16 {vr(accr(m,tt,j),4)}, {vr(b+(m*3+tt)*4,4)}, {vr(b+24+4*j,4)}, {c}", vl(b+(m*3+tt)*4,4) + vl(b+24+4*j,4)))
        return out
    def interleave(mf, rd):
        ri = 0
        for n, (txt, deps) in enumerate(mf):
            lg.need(deps)
            if 'nomfma' not in EXP or n == 0: a(txt)
            if ri < len(rd) and n >= 1:
                a(rd[ri][0]); lg.issue(rd[ri][1]); ri += 1
        while ri < len(rd):
            a(rd[ri][0]); lg.issue(rd[ri][1]); ri += 1
    NST = 8
    a(f"s_waitcnt vmcnt({10*(G1_NS-1)})")
    a("s_barrier")
    stp.mark()
    set_slot(0)
    for (t, r) in reads(0, 0): a(t); lg.issue(r)
    for s in range(NST):
        interleave(mfmas(0, s == 0), reads(1, 1))
        if s + 1 < NST:
            n_after = 1 if s + 2 < NST else 0
            lg.q = []
            a(f"s_waitcnt vmcnt({10*n_after if 'nodma' not in EXP else 0}) lgkmcnt(0)")
            a("s_barrier")
            if s + G1_NS < NST and 'nodma' not in EXP: dma_stage(s + G1_NS, s % G1_NS)
            set_slot((s + 1) % G1_NS)
            interleave(mfmas(1, False), reads(0, 0))
        else:
            interleave(mfmas(1, False), [])
    stp.mark()
    a(f"s_mov_b32 s48, {LOG2E ^ 0x80000000:#x}")
    a("s_lshl_b32 s49, s21, 3"); a("s_lshl_b32 s50, s45, 2"); a("s_add_u32 s49, s49, s50")
    a("s_mul_i32 s49, s49, 43"); a("s_add_u32 s49, s49, s23"); a("s_lshl_b32 s49, s49, 10")
    a("v_lshlrev_b32 v3, 4, v1")
    P = 128
    T = 176
    for j in range(4):
        for tt in range(3):
            g = accr(0, tt, j); u = accr(1, tt, j)
            if ROUND_GLU:
                for pr in range(2):
                    a(f"v_cvt_pk_bf16_f32 v{T+pr}, v{g+2*pr}, v{g+2*pr+1}")
                    a(f"v_cvt_pk_bf16_f32 v{T+2+pr}, v{u+2*pr}, v{u+2*pr+1}")
                for pr in range(2):
                    a(f"v_lshlrev_b32 v{g+2*pr}, 16, v{T+pr}"); a(f"v_and_b32 v{g+2*pr+1}, 0xffff0000, v{T+pr}")
                    a(f"v_lshlrev_b32 v{u+2*pr}, 16, v{T+2+pr}"); a(f"v_and_b32 v{u+2*pr+1}, 0xffff0000, v{T+2+pr}")
            for i in range(4): a(f"v_mul_f32 v{g+i}, s48, v{g+i}")
            for i in range(4): a(f"v_exp_f32 v{g+i}, v{g+i}")
            for i in range(4): a(f"v_add_f32 v{g+i}, 1.0, v{g+i}")
            for i in range(4): a(f"v_rcp_f32 v{g+i}, v{g+i}")
            if ROUND_GLU:
                for pr in range(2):
                    a(f"v_cvt_pk_bf16_f32 v{T+pr}, v{g+2*pr}, v{g+2*pr+1}")
                for pr in range(2):
                    a(f"v_lshlrev_b32 v{g+2*pr}, 16, v{T+pr}"); a(f"v_and_b32 v{g+2*pr+1}, 0xffff0000, v{T+pr}")
            for i in range(4): a(f"v_mul_f32 v{g+i}, v{g+i}, v{u+i}")
            for pr in range(2):
                a(f"v_cvt_pk_bf16_f32 v{P+j*6+tt*2+pr}, v{g+2*pr}, v{g+2*pr+1}")
    a("s_cmp_eq_u32 s46, 0")
    a("s_cbranch_scc0 G1_FH1")
    for j in range(4):
        b = P + j*6
        a(f"s_add_u32 s50, s49, {j*43*1024}")
        a(f"buffer_store_dwordx4 {vr(b,4)}, v3, s[36:39], s50 offen")
        a(f"buffer_store_dwordx2 {vr(b+4,2)}, v3, s[36:39], s50 offen offset:1024")
    a("s_branch G1_DONE")
    a.label("G1_FH1")
    for j in range(4):
        b = P + j*6
        a(f"s_add_u32 s50, s49, {j*43*1024}")
        a(f"buffer_store_dwordx2 {vr(b,2)}, v3, s[36:39], s50 offen offset:1032")
        a(f"buffer_store_dwordx4 {vr(b+2,4)}, v3, s[36:39], s50 offen offset:2048")
    a.label("G1_DONE")
    a("s_waitcnt vmcnt(0)")
    stp.mark()
    stp.flush(16, 18)
    a.label("G1_END")
    a("s_endpgm")
    return kernel_head(name) + a.finish() + kernel_desc(name, 208)
```

```python
from common import *

def gen_ln(name="ln_kernel"):
    a = Asm()
    a("s_cmp_ge_u32 s2, 256")
    a("s_cbranch_scc1 LN_END")
    stp = Stamps(a, 0)
    stp.mark()
    a(f"s_load_dwordx2 s[4:5], s[0:1], {KA['x']}")
    a(f"s_load_dwordx2 s[6:7], s[0:1], {KA['ws']}")
    a("v_and_b32 v1, 63, v0")
    a("v_lshrrev_b32 v2, 6, v0")
    a("s_waitcnt lgkmcnt(0)")
    srd(a, 8, 4, L * D * 2)
    srd(a, 12, 6, 2 << 20, WS_XN)
    srd(a, 16, 6, 2 << 20, WS_XT)
    a("s_lshl_b32 s3, s2, 13")
    a("v_lshlrev_b32 v3, 11, v2")
    a("v_lshl_add_u32 v3, v1, 4, v3")
    a("v_add_u32 v3, s3, v3")
    a("buffer_load_dwordx4 v[4:7], v3, s[8:11], 0 offen")
    a("buffer_load_dwordx4 v[8:11], v3, s[8:11], 0 offen offset:1024")
    a("s_waitcnt vmcnt(0)")
    for r in range(2):
        for i in range(4):
            src = 4 + 4 * r + i
            a(f"v_lshlrev_b32 v{12 + 8*r + 2*i}, 16, v{src}")
            a(f"v_and_b32 v{13 + 8*r + 2*i}, 0xffff0000, v{src}")
    for r in range(2):
        b = 12 + 8 * r
        a(f"v_add_f32 v{28+r}, v{b}, v{b+1}")
        for i in range(2, 8):
            a(f"v_add_f32 v{28+r}, v{28+r}, v{b+i}")
    wave_sum(a, [28, 29], [20, 21])
    a("s_mov_b32 s24, 0x3b000000")
    for r in range(2):
        a(f"v_mov_b32 v{28+r}, s{20+r}")
        a(f"v_mul_f32 v{28+r}, s24, v{28+r}")
    for r in range(2):
        b = 12 + 8 * r
        for i in range(8):
            a(f"v_sub_f32 v32, v{b+i}, v{28+r}")
            if i == 0: a(f"v_mul_f32 v{30+r}, v32, v32")
            else: a(f"v_fmac_f32 v{30+r}, v32, v32")
    wave_sum(a, [30, 31], [22, 23])
    a(f"s_mov_b32 s25, {EPS}")
    for r in range(2):
        a(f"v_mov_b32 v{30+r}, s{22+r}")
        a(f"v_mul_f32 v{30+r}, s24, v{30+r}")
        round_bf16(a, 30 + r, 30 + r)
        a(f"v_add_f32 v{30+r}, s25, v{30+r}")
        round_bf16(a, 30 + r, 30 + r)
        a(f"v_sqrt_f32 v{30+r}, v{30+r}")
        round_bf16(a, 30 + r, 30 + r)
        a(f"v_rcp_f32 v{30+r}, v{30+r}")
        round_bf16(a, 28 + r, 28 + r)
    for r in range(2):
        b = 12 + 8 * r
        for i in range(4):
            a(f"v_sub_f32 v{b+2*i}, v{b+2*i}, v{28+r}")
            a(f"v_sub_f32 v{b+2*i+1}, v{b+2*i+1}, v{28+r}")
            a(f"v_cvt_pk_bf16_f32 v32, v{b+2*i}, v{b+2*i+1}")
            a(f"v_lshlrev_b32 v33, 16, v32")
            a(f"v_and_b32 v34, 0xffff0000, v32")
            a(f"v_mul_f32 v33, v33, v{30+r}")
            a(f"v_mul_f32 v34, v34, v{30+r}")
            a(f"v_cvt_pk_bf16_f32 v{4+4*r+i}, v33, v34")
    a("buffer_store_dwordx4 v[4:7], v3, s[12:15], 0 offen")
    a("buffer_store_dwordx4 v[8:11], v3, s[12:15], 0 offen offset:1024")
    a("v_lshlrev_b32 v35, 11, v2")
    a("v_lshl_add_u32 v35, v1, 4, v35")
    a("ds_write_b128 v35, v[4:7]")
    a("ds_write_b128 v35, v[8:11] offset:1024")
    a("s_waitcnt lgkmcnt(0)")
    a("s_barrier")
    a("v_lshlrev_b32 v36, 2, v0")
    for r in range(8):
        a(f"ds_read_b32 v{40+r}, v36 offset:{1024*r}")
    a("s_mov_b32 s26, 0x05040100")
    a("s_mov_b32 s27, 0x07060302")
    a("s_waitcnt lgkmcnt(0)")
    for i in range(4):
        a(f"v_perm_b32 v{48+i}, v{41+2*i}, v{40+2*i}, s26")
        a(f"v_perm_b32 v{52+i}, v{41+2*i}, v{40+2*i}, s27")
    a("s_lshl_b32 s3, s2, 13")
    a("v_lshlrev_b32 v37, 5, v0")
    a("v_add_u32 v37, s3, v37")
    a("buffer_store_dwordx4 v[48:51], v37, s[16:19], 0 offen")
    a("buffer_store_dwordx4 v[52:55], v37, s[16:19], 0 offen offset:16")
    a("s_waitcnt vmcnt(0)")
    stp.mark()
    a("v_readfirstlane_b32 s18, v2")
    stp.flush(6, 18)
    a.label("LN_END")
    a("s_endpgm")
    return kernel_head(name) + a.finish() + kernel_desc(name, 64)
```

```python
import sys
from common import *
from k_ln import gen_ln
from k_ssm import gen_ssm, S_LDS
from k_gemm1 import gen_gemm1, G1_LDS
from k_gemm2 import gen_gemm2, G2_LDS
hdr_comment = open("cdna_kernels/" + NAME + ".s.ref").read().split("; Override")[0]
def build(kernels):
    s = hdr_comment
    for (n, g, b, lds, _) in kernels:
        s += f"; @launch kernel={n} grid=({g},1,1) block=({b},1,1) lds={lds}\n"
    s += '.amdgcn_target "amdgcn-amd-amdhsa--gfx950"\n.text\n'
    for k in kernels: s += k[4]
    return s
if __name__ == "__main__":
    import common
    if "--stamp" in sys.argv:
        common.STAMP = True; sys.argv.remove("--stamp")
    import k_gemm1
    for x in list(sys.argv):
        if x.startswith("--g1exp="): k_gemm1.EXP = set(x[8:].split(",")); sys.argv.remove(x)
    if "--noround" in sys.argv: k_gemm1.ROUND_GLU = False; sys.argv.remove("--noround")
    import k_gemm2
    for x in list(sys.argv):
        if x.startswith("--perturb="): k_gemm2.PERTURB = float(x[10:]); sys.argv.remove(x)
    ks = [("ln_kernel", 256, 256, 8192, gen_ln()),
          ("ssm_kernel", 256, 256, S_LDS, gen_ssm()),
          ("gemm1_kernel", 256, 256, G1_LDS, gen_gemm1()),
          ("gemm2_kernel", 256, 256, G2_LDS, gen_gemm2())]
    open(sys.argv[1] if len(sys.argv) > 1 else "k.s", "w").write(build(ks))
```

```python
from common import *
G2_NS = 7
PERTURB = None
G2_WRING = G2_NS * 4096
G2_LDS = 4 * G2_WRING + 0

def gen_gemm2(name="gemm2_kernel"):
    a = Asm()
    stp = Stamps(a, 3)
    a("s_cmp_ge_u32 s2, 256")
    a("s_cbranch_scc1 G2_END")
    stp.mark()
    a(f"s_load_dwordx2 s[4:5], s[0:1], {KA['wd']}")
    a(f"s_load_dwordx2 s[6:7], s[0:1], {KA['x']}")
    a(f"s_load_dwordx2 s[8:9], s[0:1], {KA['out']}")
    a(f"s_load_dwordx2 s[16:17], s[0:1], {KA['ws']}")
    a("v_and_b32 v1, 63, v0")
    a("v_lshrrev_b32 v2, 6, v0")
    a("s_nop 0")
    a("v_readfirstlane_b32 s18, v2")
    a("s_and_b32 s19, s2, 7"); a("s_lshr_b32 s20, s2, 3")
    a("s_lshl_b32 s21, s19, 2"); a("s_lshr_b32 s22, s20, 3"); a("s_add_u32 s21, s21, s22")
    a("s_and_b32 s22, s20, 7")
    a("s_waitcnt lgkmcnt(0)")
    srd(a, 24, 4, F * D * 2)
    srd(a, 28, 16, HF_BYTES, WS_HF)
    srd(a, 32, 6, L * D * 2)
    srd(a, 36, 8, L * D * 2)
    srd(a, 40, 16, 2 << 20, WS_AT)
    a("s_mul_i32 s23, s18, 11")
    a("s_lshl_b32 s44, s21, 2"); a("s_mul_i32 s44, s44, 43"); a("s_add_u32 s44, s44, s23"); a("s_lshl_b32 s44, s44, 10")
    a("v_lshlrev_b32 v3, 4, v1")
    a("v_lshrrev_b32 v4, 3, v1"); a("v_and_b32 v5, 7, v1"); a("v_bfe_u32 v6, v4, 1, 2"); a("v_lshlrev_b32 v6, 1, v6")
    a("v_xor_b32 v5, v5, v6"); a("v_lshlrev_b32 v4, 10, v4"); a("v_lshl_add_u32 v4, v5, 4, v4")
    a("s_lshl_b32 s45, s23, 15"); a("s_lshl_b32 s46, s22, 7"); a("s_add_u32 s45, s45, s46")
    a(f"s_mul_i32 s46, s18, {G2_WRING}")
    NSTEP = 11
    AR = 80
    def loads(step):
        slot = step % G2_NS
        for j in range(4):
            if step == 10:
                a(f"s_add_u32 s47, s44, {j*43*1024 + step*1024}")
                a("s_cmp_eq_u32 s18, 3")
                a(f"s_cselect_b32 s47, {HF_BYTES}, s47")
            else:
                a(f"s_add_u32 s47, s44, {j*43*1024 + step*1024}")
            a(f"buffer_load_dwordx4 {vr(AR + slot*16 + 4*j, 4)}, v3, s[28:31], s47 offen")
        for t in range(4):
            a(f"s_add_u32 m0, s46, {slot*4096 + t*1024}")
            a(f"s_add_u32 s47, s45, {step*32768 + t*8192}")
            a(f"buffer_load_dwordx4 v4, s[24:27], s47 offen lds")
    for s in range(G2_NS): loads(s)
    a("v_and_b32 v5, 15, v1"); a("v_lshrrev_b32 v6, 4, v1")
    a("v_lshrrev_b32 v7, 2, v5"); a("v_lshl_add_u32 v7, v6, 2, v7")
    a("v_bfe_u32 v8, v7, 1, 2"); a("v_lshlrev_b32 v8, 5, v8"); a("v_lshl_add_u32 v8, v7, 7, v8")
    a("v_bfe_u32 v9, v5, 1, 1"); a("v_lshl_add_u32 v8, v9, 4, v8")
    a("v_and_b32 v9, 1, v5"); a("v_lshl_add_u32 v8, v9, 3, v8")
    a("v_add_u32 v8, s46, v8")
    for nt in range(4):
        a(f"v_xor_b32 v{10+nt}, {nt<<5}, v8")
    ACC = 16
    BF = [192, 208]
    lg = Trk(a, "lgkmcnt")
    def breads(step, st):
        slot = step % G2_NS
        out = []
        for nt in range(4):
            for hf in range(2):
                r = BF[st] + 4*nt + 2*hf
                out.append((f"ds_read_b64_tr_b16 {vr(r,2)}, v{10+nt} offset:{slot*4096 + hf*2048}", vl(r,2)))
        return out
    issued = G2_NS
    def wait_step(step):
        n_after = (issued - 1 - step) * 8
        a(f"s_waitcnt vmcnt({n_after})")
    wait_step(0)
    stp.mark()
    for (t, r) in breads(0, 0): a(t); lg.issue(r)
    for step in range(NSTEP):
        st = step & 1
        slot = step % G2_NS
        rd = []
        if step + 1 < NSTEP:
            wait_step(step + 1)
            rd = breads(step + 1, st ^ 1)
        ri = 0; n = 0
        for j in range(4):
            for nt in range(4):
                ar = AR + slot*16 + 4*j; br = BF[st] + 4*nt
                lg.need(vl(br, 4))
                c = "0" if step == 0 else vr(ACC + (j*4+nt)*4, 4)
                a(f"v_mfma_f32_16x16x32_bf16 {vr(ACC + (j*4+nt)*4, 4)}, {vr(ar,4)}, {vr(br,4)}, {c}")
                n += 1
                if ri < len(rd) and n >= 2:
                    a(rd[ri][0]); lg.issue(rd[ri][1]); ri += 1
        while ri < len(rd):
            a(rd[ri][0]); lg.issue(rd[ri][1]); ri += 1
        if issued < NSTEP:
            loads(issued); issued += 1
    stp.mark()
    a("s_lshl_b32 s47, s21, 3"); a("s_lshl_b32 s48, s18, 1"); a("s_add_u32 s47, s47, s48")
    a("s_lshl_b32 s47, s47, 13"); a("s_lshl_b32 s48, s22, 10"); a("s_add_u32 s47, s47, s48")
    a("v_lshrrev_b32 v7, 1, v6"); a("v_lshlrev_b32 v7, 13, v7")
    a("v_lshl_add_u32 v7, v5, 4, v7"); a("v_and_b32 v8, 1, v6"); a("v_lshl_add_u32 v7, v8, 3, v7")
    for nt in range(4):
        a(f"buffer_load_dwordx2 {vr(80+2*nt,2)}, v7, s[40:43], s47 offen offset:{nt*256}")
    a("s_lshl_b32 s48, s21, 16"); a("s_lshl_b32 s49, s18, 14"); a("s_add_u32 s48, s48, s49"); a("s_lshl_b32 s49, s22, 7"); a("s_add_u32 s48, s48, s49")
    a("v_lshrrev_b32 v8, 2, v1"); a("v_lshlrev_b32 v8, 10, v8"); a("v_and_b32 v9, 3, v1"); a("v_lshl_add_u32 v8, v9, 5, v8")
    a(f"buffer_load_dwordx4 v[88:91], v8, s[32:35], s48 offen")
    a(f"buffer_load_dwordx4 v[92:95], v8, s[32:35], s48 offen offset:16")
    a("s_waitcnt lgkmcnt(0)")
    a("s_barrier")
    a("s_lshl_b32 s49, s18, 12")
    a("v_add_u32 v9, s49, v3")
    for j in range(4):
        for nt in range(4):
            a(f"ds_write_b128 v9, {vr(ACC + (j*4+nt)*4, 4)} offset:{j*16384 + nt*1024}")
    a("s_waitcnt lgkmcnt(0)")
    a("s_barrier")
    a("s_lshl_b32 s49, s18, 14")
    a("v_add_u32 v9, s49, v3")
    for src in range(4):
        for nt in range(4):
            a(f"ds_read_b128 {vr(96 + (src*4+nt)*4, 4)}, v9 offset:{src*4096 + nt*1024}")
    a("s_waitcnt lgkmcnt(0)")
    for nt in range(4):
        for i in range(4):
            r = 96 + nt*4 + i
            a(f"v_add_f32 v{r}, v{r}, v{r+16}"); a(f"v_add_f32 v{r+32}, v{r+32}, v{r+48}"); a(f"v_add_f32 v{r}, v{r}, v{r+32}")
    a("s_waitcnt vmcnt(2)")
    a("s_mov_b32 s50, 0x05040100"); a("s_mov_b32 s51, 0x07060302"); a("s_mov_b32 s52, 0x07060100")
    a(f"s_mul_i32 s49, s18, 4352"); a(f"s_add_u32 s49, s49, 65536")
    a("v_mul_u32_u24 v9, 1088, v6"); a("v_lshl_add_u32 v9, v5, 2, v9"); a("v_add_u32 v9, s49, v9")
    for nt in range(4):
        r = 96 + nt*4
        a(f"v_cvt_pk_bf16_f32 v{r}, v{r}, v{r+1}"); a(f"v_cvt_pk_bf16_f32 v{r+2}, v{r+2}, v{r+3}")
        at0 = 80 + 2*nt
        a(f"v_perm_b32 v{112+0}, v{r}, v{at0}, s50")
        a(f"v_perm_b32 v{112+1}, v{r}, v{at0}, s51")
        a(f"v_perm_b32 v{112+2}, v{r+2}, v{at0+1}, s50")
        a(f"v_perm_b32 v{112+3}, v{r+2}, v{at0+1}, s51")
        for i in range(4):
            a(f"ds_write_b32 v9, v{112+i} offset:{i*272 + nt*64}")
    a("v_lshrrev_b32 v9, 2, v1"); a("v_mul_u32_u24 v9, 272, v9"); a("v_and_b32 v10, 3, v1"); a("v_lshl_add_u32 v9, v10, 6, v9"); a("v_add_u32 v9, s49, v9")
    a("s_waitcnt lgkmcnt(0)")
    for q in range(4):
        a(f"ds_read_b128 {vr(96+4*q,4)}, v9 offset:{16*q}")
    a("s_waitcnt vmcnt(0) lgkmcnt(0)")
    for q in range(8):
        e0 = 96 + 2*q; e1 = e0 + 1; xr = 88 + q
        a(f"v_lshlrev_b32 v112, 16, v{xr}"); a(f"v_and_b32 v113, 0xffff0000, v{xr}")
        a(f"v_lshlrev_b32 v114, 16, v{e0}"); a(f"v_lshlrev_b32 v115, 16, v{e1}")
        a(f"v_add_f32 v112, v112, v114"); a(f"v_add_f32 v113, v113, v115")
        a(f"v_cvt_pk_bf16_f32 v112, v112, v113")
        a(f"v_lshlrev_b32 v113, 16, v112"); a(f"v_and_b32 v112, 0xffff0000, v112")
        a(f"v_and_b32 v114, 0xffff0000, v{e0}"); a(f"v_and_b32 v115, 0xffff0000, v{e1}")
        a(f"v_add_f32 v113, v113, v114"); a(f"v_add_f32 v112, v112, v115")
        if PERTURB is not None and q == 0:
            import struct
            bits = struct.unpack("<I", struct.pack("<f", PERTURB))[0]
            a(f"v_mov_b32 v114, {bits:#x}")
            a("v_lshl_add_u32 v115, s2, 8, v0")
            a("v_cmp_eq_u32 vcc, 0, v115")
            a("v_cndmask_b32 v114, 0, v114, vcc")
            a("v_add_f32 v113, v113, v114")
        a(f"v_cvt_pk_bf16_f32 v{116+q}, v113, v112")
    a(f"buffer_store_dwordx4 v[116:119], v8, s[36:39], s48 offen")
    a(f"buffer_store_dwordx4 v[120:123], v8, s[36:39], s48 offen offset:16")
    a("s_waitcnt vmcnt(0)")
    stp.mark()
    stp.flush(16, 18)
    a.label("G2_END")
    a("s_endpgm")
    return kernel_head(name) + a.finish() + kernel_desc(name, 224)
```

```python
from asmlib import *
import struct
NAME = "parallel_sum__ssm_conv_s4d__glu_gated_glu__prompt"
L, D, NM, F = 2048, 512, 128, 1376
W_XT = 0
W_AT = 2 << 20
W_HF = 4 << 20
HF_BYTES = 128 * 43 * 1024
W_FL = 10 << 20
FL_FX = 0
FL_FH = 4096
FL_FA = 8192
FL_ST = 16384
FL_BYTES = 65536
LOG2E = 0x3fb8aa3b
NLOG2E = 0xbfb8aa3b
INV2PI = 0x3e22f983
EPS = 0x3727c5ac
def fbits(x): return struct.unpack("<I", struct.pack("<f", x))[0]

S_X, S_WG, S_WU, S_WD, S_HF, S_XT, S_AT, S_OUT, S_FL = 8, 12, 16, 20, 24, 28, 32, 36, 40
S_WAVE, S_RW, S_MT, S_NG, S_U0, S_NONCE, S_CP, S_RB, S_CB = 44, 45, 46, 47, 48, 49, 50, 51, 52
KP = dict(x=56, lar=58, aim=60, cr=62, ci=64, ldt=66, dsk=68, bx=70, wg=72, wu=74, wd=76, out=78, dbg=80, ws=82)

STAMP = False
W_STAMP = 64 << 20
class Stamps:
    def __init__(self, a):
        self.a = a; self.n = 0
    def mark(self, first=False):
        if not STAMP: return
        a = self.a
        a("s_waitcnt lgkmcnt(0)")
        a("s_memtime s[84:85]")
        a("s_waitcnt lgkmcnt(0)")
        a(f"s_mov_b32 s{86 + self.n}, s84")
        if first:
            a("s_memrealtime s[84:85]"); a("s_waitcnt lgkmcnt(0)"); a("s_mov_b32 s98, s84")
        self.n += 1
        assert self.n <= 12
    def fork(self):
        s = Stamps(self.a); s.n = self.n; return s
    def flush(self):
        if not STAMP: return
        a = self.a
        a(f"s_add_u32 s100, s{KP['ws']}, {W_STAMP}")
        a(f"s_addc_u32 s101, s{KP['ws']+1}, 0")
        a(f"s_lshl_b32 s99, s2, 3")
        a(f"s_add_u32 s99, s99, s{S_WAVE}")
        a(f"s_lshl_b32 s99, s99, 6")
        a("s_add_u32 s100, s100, s99"); a("s_addc_u32 s101, s101, 0")
        a("s_memrealtime s[84:85]"); a("s_waitcnt lgkmcnt(0)")
        a("v_mov_b32 v0, 0")
        a("v_mov_b32 v1, s98"); a("global_store_dword v0, v1, s[100:101] offset:56")
        a("v_mov_b32 v1, s84"); a("global_store_dword v0, v1, s[100:101] offset:60")
        for i in range(self.n):
            a(f"v_mov_b32 v1, s{86+i}")
            a(f"global_store_dword v0, v1, s[100:101] offset:{4*i}")
        a("s_waitcnt vmcnt(0)")

def srd(a, s, ptr, nbytes, add=0):
    if add:
        a(f"s_add_u32 s{s}, s{ptr}, {add}")
        a(f"s_addc_u32 s{s+1}, s{ptr+1}, 0")
    else:
        a(f"s_mov_b32 s{s}, s{ptr}")
        a(f"s_mov_b32 s{s+1}, s{ptr+1}")
    a(f"s_mov_b32 s{s+2}, {nbytes}")
    a(f"s_mov_b32 s{s+3}, 0x20000")
def sr(s): return f"s[{s}:{s+3}]"

def round_bf16(a, dst, src):
    a(f"v_cvt_pk_bf16_f32 v{dst}, v{src}, v{src}")
    a(f"v_and_b32 v{dst}, 0xffff0000, v{dst}")

def wave_sum(a, regs, tmp_s):
    for pat in ("quad_perm:[1,0,3,2]", "quad_perm:[2,3,0,1]", "row_half_mirror", "row_mirror"):
        for r in regs:
            a(f"v_add_f32_dpp v{r}, v{r}, v{r} {pat} row_mask:0xf bank_mask:0xf")
    for pat, rm in (("row_bcast:15", "0xa"), ("row_bcast:31", "0xc")):
        for r in regs:
            a(f"v_add_f32_dpp v{r}, v{r}, v{r} {pat} row_mask:{rm} bank_mask:0xf")
    for r, s in zip(regs, tmp_s):
        a(f"v_readlane_b32 s{s}, v{r}, 63")

SPIN_MAX = 200000
_uid = [0]
def poll(a, voff, vtmp, soff, nwords4=False, errcode=1):
    _uid[0] += 1
    lab = f"POLL{_uid[0]}"
    a(f"s_mov_b32 s53, {SPIN_MAX}")
    a.label(lab)
    if nwords4:
        a(f"buffer_load_dwordx4 v[{vtmp}:{vtmp+3}], v{voff}, {sr(S_FL)}, {soff} offen sc1")
        a("s_waitcnt vmcnt(0)")
        a(f"v_xor_b32 v{vtmp}, s{S_NONCE}, v{vtmp}")
        for i in range(1, 4):
            a(f"v_xor_b32 v{vtmp+i}, s{S_NONCE}, v{vtmp+i}")
        a(f"v_or_b32 v{vtmp}, v{vtmp}, v{vtmp+1}"); a(f"v_or_b32 v{vtmp+2}, v{vtmp+2}, v{vtmp+3}"); a(f"v_or_b32 v{vtmp}, v{vtmp}, v{vtmp+2}")
        a(f"v_cmp_eq_u32 vcc, 0, v{vtmp}")
    else:
        a(f"buffer_load_dword v{vtmp}, v{voff}, {sr(S_FL)}, {soff} offen sc1")
        a("s_waitcnt vmcnt(0)")
        a(f"v_cmp_eq_u32 vcc, s{S_NONCE}, v{vtmp}")
    a("s_cmp_eq_u64 vcc, -1")
    a(f"s_cbranch_scc1 {lab}_OK")
    a("s_sleep 1")
    a("s_sub_u32 s53, s53, 1")
    a("s_cmp_lg_u32 s53, 0")
    a(f"s_cbranch_scc1 {lab}")
    a("v_mov_b32 v%d, %d" % (vtmp, errcode))
    a("v_mov_b32 v%d, 0" % (vtmp + 1))
    a(f"global_store_dword v{vtmp+1}, v{vtmp}, s[{KP['dbg']}:{KP['dbg']+1}] offset:4")
    a.label(f"{lab}_OK")

def sbar(a, vaddr, vtmp, k, nw=4):
    _uid[0] += 1
    lab = f"SBAR{_uid[0]}"
    a("s_waitcnt lgkmcnt(0)")
    a("s_mov_b64 exec, 1")
    a(f"ds_add_u32 v{vaddr}, v{vtmp+1}")
    a("s_mov_b64 exec, -1")
    a(f"s_mov_b32 s53, {SPIN_MAX}")
    a.label(lab)
    a(f"ds_read_b32 v{vtmp}, v{vaddr}")
    a("s_waitcnt lgkmcnt(0)")
    a(f"v_readfirstlane_b32 s54, v{vtmp}")
    a(f"s_cmp_ge_u32 s54, {nw * k}")
    a(f"s_cbranch_scc1 {lab}_OK")
    a("s_sub_u32 s53, s53, 1")
    a("s_cmp_lg_u32 s53, 0")
    a(f"s_cbranch_scc1 {lab}")
    a.label(f"{lab}_OK")
```

```python
import sys
from fused_common import *
import fused_common as fc

SLOT = 40960
LT = 3 * SLOT
P_U0 = 0; P_USTR = 4608
P_KW = 9216; P_KCH = 16640; P_KCP = 4160
P_TAB = 42496
P_TABOFF = P_TAB - 4 * 0x3F7F
P_CS = 48384
P_RC = 49152
P_MISC = 51200
P_G = 53248
G2_NS = 6
G2_WRING = G2_NS * 4096
P_GEN = P_KW; P_GW = 8704; P_PITCH = 272
LDS_TOTAL = 163840

def cmul(d, z, w):
    return [f"v_pk_mul_f32 v[{d}:{d+1}], v[{z}:{z+1}], v[{w}:{w+1}] op_sel:[0,0] op_sel_hi:[1,0]",
            f"v_pk_fma_f32 v[{d}:{d+1}], v[{z}:{z+1}], v[{w}:{w+1}], v[{d}:{d+1}] op_sel:[1,1,0] op_sel_hi:[0,1,1] neg_lo:[0,1,0]"]

def prologue(a, stp):
    a("s_cmp_ge_u32 s2, 256")
    a("s_cbranch_scc1 K_END")
    a("s_load_dwordx16 s[56:71], s[0:1], 0")
    a("s_load_dwordx8 s[72:79], s[0:1], 64")
    a("s_load_dwordx4 s[80:83], s[0:1], 96")
    stp.mark(first=False) if False else None
    a("v_and_b32 v1, 63, v0")
    a("v_lshrrev_b32 v2, 6, v0")
    a("s_nop 0")
    a(f"v_readfirstlane_b32 s{S_WAVE}, v2")
    a(f"s_and_b32 s{S_RW}, s{S_WAVE}, 3")
    a("s_and_b32 s53, s2, 7"); a("s_lshr_b32 s54, s2, 3")
    a(f"s_and_b32 s{S_MT}, s53, 1"); a(f"s_lshl_b32 s{S_MT}, s{S_MT}, 3"); a("s_and_b32 s55, s54, 7"); a(f"s_add_u32 s{S_MT}, s{S_MT}, s55")
    a(f"s_lshr_b32 s{S_NG}, s53, 1"); a(f"s_lshl_b32 s{S_NG}, s{S_NG}, 2"); a("s_lshr_b32 s55, s54, 3"); a(f"s_add_u32 s{S_NG}, s{S_NG}, s55")
    a(f"s_lshl_b32 s{S_U0}, s{S_NG}, 3"); a(f"s_mul_i32 s{S_U0}, s{S_U0}, 21846"); a(f"s_lshr_b32 s{S_U0}, s{S_U0}, 16")
    a(f"s_lshl_b32 s{S_CP}, s53, 5"); a(f"s_add_u32 s{S_CP}, s{S_CP}, s54")
    a(f"s_lshl_b32 s{S_RB}, s53, 2"); a("s_lshr_b32 s55, s54, 3"); a(f"s_add_u32 s{S_RB}, s{S_RB}, s55")
    a(f"s_and_b32 s{S_CB}, s54, 7")
    a("s_waitcnt lgkmcnt(0)")
    srd(a, S_X, KP['x'], L * D * 2)
    srd(a, S_WG, KP['wg'], D * F * 2); srd(a, S_WU, KP['wu'], D * F * 2); srd(a, S_WD, KP['wd'], F * D * 2)
    srd(a, S_HF, KP['ws'], HF_BYTES, W_HF); srd(a, S_XT, KP['ws'], 2 << 20, W_XT); srd(a, S_AT, KP['ws'], 2 << 20, W_AT)
    srd(a, S_OUT, KP['out'], L * D * 2); srd(a, S_FL, KP['ws'], FL_BYTES, W_FL)
    a(f"s_mov_b32 s{S_NONCE}, 0")
    stp.mark(first=True)
    a(f"s_cmp_ge_u32 s{S_WAVE}, 4")
    a("s_cbranch_scc1 S_PATH")

def g_path(a, stp):
    gw = f"s{S_RW}"
    a(f"s_lshl_b32 s53, s{S_MT}, 7"); a(f"s_lshl_b32 s54, s{S_NG}, 3"); a("s_add_u32 s53, s53, s54"); a(f"s_lshl_b32 s54, {gw}, 1"); a("s_add_u32 s53, s53, s54")
    a("s_lshl_b32 s53, s53, 10")
    a("v_lshlrev_b32 v3, 4, v1")
    a(f"buffer_load_dwordx4 v[4:7], v3, {sr(S_X)}, s53 offen")
    a(f"buffer_load_dwordx4 v[8:11], v3, {sr(S_X)}, s53 offen offset:1024")
    a(f"s_lshr_b32 s70, {gw}, 1"); a(f"s_and_b32 s71, {gw}, 1")
    a("v_and_b32 v33, 15, v1"); a("v_lshrrev_b32 v34, 4, v1")
    a("v_lshrrev_b32 v35, 1, v33"); a("v_xor_b32 v35, v35, v34"); a("v_lshlrev_b32 v35, 4, v35")
    a("v_lshl_add_u32 v35, v33, 7, v35")
    a("s_lshl_b32 s54, s70, 13")
    a("v_add_u32 v56, s54, v35")
    a("v_xor_b32 v57, 64, v56")
    a("v_lshrrev_b32 v35, 2, v33"); a("v_lshl_add_u32 v35, v34, 3, v35"); a("v_mul_u32_u24 v35, 192, v35")
    a("v_and_b32 v36, 1, v33"); a("v_lshl_add_u32 v35, v36, 3, v35"); a("v_add_u32 v35, 16384, v35")
    a("v_bfe_u32 v36, v33, 1, 1")
    a("v_and_b32 v37, 1, v34"); a("v_lshlrev_b32 v37, 1, v37")
    a("s_mul_i32 s54, s71, 6")
    for tt in range(3):
        a(f"v_add_u32 v38, s54, v36"); a(f"v_add_u32 v38, {2*tt}, v38"); a("v_xor_b32 v38, v38, v37")
        a(f"v_lshl_add_u32 v{58+tt}, v38, 4, v35")
    a("s_waitcnt vmcnt(0)")
    for r in range(2):
        for i in range(4):
            src = 4 + 4 * r + i
            a(f"v_lshlrev_b32 v{12 + 8*r + 2*i}, 16, v{src}")
            a(f"v_and_b32 v{13 + 8*r + 2*i}, 0xffff0000, v{src}")
    for r in range(2):
        b = 12 + 8 * r
        a(f"v_add_f32 v{28+r}, v{b}, v{b+1}")
        for i in range(2, 8): a(f"v_add_f32 v{28+r}, v{28+r}, v{b+i}")
    wave_sum(a, [28, 29], [53, 54])
    a("s_mov_b32 s55, 0x3b000000")
    for r in range(2):
        a(f"v_mov_b32 v{28+r}, s{53+r}")
        a(f"v_mul_f32 v{28+r}, s55, v{28+r}")
    for r in range(2):
        b = 12 + 8 * r
        for i in range(8):
            a(f"v_sub_f32 v32, v{b+i}, v{28+r}")
            if i == 0: a(f"v_mul_f32 v{30+r}, v32, v32")
            else: a(f"v_fmac_f32 v{30+r}, v32, v32")
    wave_sum(a, [30, 31], [53, 54])
    for r in range(2):
        a(f"v_mov_b32 v{30+r}, s{53+r}")
        a(f"v_mul_f32 v{30+r}, s55, v{30+r}")
        round_bf16(a, 30 + r, 30 + r)
        a(f"v_add_f32 v{30+r}, {EPS:#x}, v{30+r}")
        round_bf16(a, 30 + r, 30 + r)
        a(f"v_sqrt_f32 v{30+r}, v{30+r}")
        round_bf16(a, 30 + r, 30 + r)
        a(f"v_rcp_f32 v{40+r}, v{30+r}")
        round_bf16(a, 28 + r, 28 + r)
    for r in range(2):
        b = 12 + 8 * r
        for i in range(4):
            a(f"v_sub_f32 v{b+2*i}, v{b+2*i}, v{28+r}")
            a(f"v_sub_f32 v{b+2*i+1}, v{b+2*i+1}, v{28+r}")
            a(f"v_cvt_pk_bf16_f32 v32, v{b+2*i}, v{b+2*i+1}")
            a(f"v_lshlrev_b32 v33, 16, v32")
            a(f"v_and_b32 v34, 0xffff0000, v32")
            a(f"v_mul_f32 v33, v33, v{40+r}")
            a(f"v_mul_f32 v34, v34, v{40+r}")
            a(f"v_cvt_pk_bf16_f32 v{4+4*r+i}, v33, v34")
    a(f"s_lshl_b32 s53, {gw}, 11"); a(f"s_add_u32 s53, s53, {LT}")
    a("v_add_u32 v35, s53, v3")
    a("ds_write_b128 v35, v[4:7]")
    a("ds_write_b128 v35, v[8:11] offset:1024")
    a("v_mov_b32 v36, v28"); a("v_mov_b32 v37, v30"); a("v_mov_b32 v38, v29"); a("v_mov_b32 v39, v31")
    a(f"s_lshl_b32 s53, {gw}, 4"); a(f"s_add_u32 s53, s53, {LT + 8192}")
    a("v_mov_b32 v35, s53")
    a("s_mov_b64 exec, 1")
    a("ds_write_b128 v35, v[36:39]")
    a("s_mov_b64 exec, -1")
    for i in range(5): a(f"v_mov_b32 v{16+i}, v{56+i}")
    a("s_waitcnt lgkmcnt(0)")
    a("s_barrier")
    stp.mark()
    ACC = 32; FA = [128, 168]
    def accr(m, tt, j): return ACC + ((m*3 + tt)*4 + j)*4
    lg = Trk(a, "lgkmcnt")
    def set_slot(slot):
        sb = slot * SLOT
        for i in range(5):
            if sb == 0: a(f"v_mov_b32 v{22+i}, v{16+i}")
            else: a(f"v_add_u32 v{22+i}, {sb}, v{16+i}")
    def reads(s2, st):
        b = FA[st]; out = []
        for j in range(4):
            out.append((f"ds_read_b128 {vr(b+24+4*j,4)}, v{22+s2} offset:{2048*j}", vl(b+24+4*j,4)))
        for m in range(2):
            for tt in range(3):
                r = b + (m*3+tt)*4
                for hf in range(2):
                    out.append((f"ds_read_b64_tr_b16 {vr(r+2*hf,2)}, v{24+tt} offset:{m*12288 + s2*6144 + hf*768}", vl(r+2*hf,2)))
        return out
    def mfmas(st, first):
        b = FA[st]; out = []
        for m in range(2):
            for tt in range(3):
                for j in range(4):
                    c = "0" if first else vr(accr(m,tt,j),4)
                    out.append((f"v_mfma_f32_16x16x32_bf16 {vr(accr(m,tt,j),4)}, {vr(b+(m*3+tt)*4,4)}, {vr(b+24+4*j,4)}, {c}", vl(b+(m*3+tt)*4,4) + vl(b+24+4*j,4)))
        return out
    def interleave(mf, rd):
        ri = 0
        for n, (txt, deps) in enumerate(mf):
            lg.need(deps); a(txt)
            if ri < len(rd) and n >= 1:
                a(rd[ri][0]); lg.issue(rd[ri][1]); ri += 1
        while ri < len(rd):
            a(rd[ri][0]); lg.issue(rd[ri][1]); ri += 1
    NST = 8
    set_slot(0)
    for (t, r) in reads(0, 0): a(t); lg.issue(r)
    for s in range(NST):
        interleave(mfmas(0, s == 0), reads(1, 1))
        lg.q = []
        a("s_waitcnt lgkmcnt(0)")
        a("s_barrier")
        if s + 1 < NST:
            set_slot((s + 1) % 4)
            interleave(mfmas(1, False), reads(0, 0))
        else:
            interleave(mfmas(1, False), [])
    stp.mark()
    a("s_setprio 1")
    a(f"s_mul_i32 s53, {gw}, 11")
    a("v_lshrrev_b32 v4, 3, v1"); a("v_and_b32 v5, 7, v1"); a("v_bfe_u32 v6, v4, 1, 2"); a("v_lshlrev_b32 v6, 1, v6")
    a("v_xor_b32 v5, v5, v6"); a("v_lshlrev_b32 v4, 10, v4"); a("v_lshl_add_u32 v4, v5, 4, v4")
    S_BOFF, S_RING, S_AOFF, S_XOFF = 72, 73, 74, 75
    a(f"s_lshl_b32 s{S_BOFF}, s53, 15"); a(f"s_lshl_b32 s54, s{S_CB}, 7"); a(f"s_add_u32 s{S_BOFF}, s{S_BOFF}, s54")
    a(f"s_mul_i32 s{S_RING}, {gw}, {G2_WRING}"); a(f"s_add_u32 s{S_RING}, s{S_RING}, {P_G}")
    a(f"s_lshl_b32 s{S_AOFF}, s{S_RB}, 2"); a(f"s_mul_i32 s{S_AOFF}, s{S_AOFF}, 43"); a(f"s_add_u32 s{S_AOFF}, s{S_AOFF}, s53"); a(f"s_lshl_b32 s{S_AOFF}, s{S_AOFF}, 10")
    vm = Trk(a, "vmcnt")
    def loadB(step):
        slot = step % G2_NS
        for t in range(4):
            a(f"s_add_u32 m0, s{S_RING}, {slot*4096 + t*1024}")
            a(f"s_add_u32 s54, s{S_BOFF}, {step*32768 + t*8192}")
            a(f"buffer_load_dwordx4 v4, {sr(S_WD)}, s54 offen lds"); vm.issue([f"B{step}"])
    RC = 208; CS = 224
    a(f"v_mov_b32 v5, {P_MISC}")
    a("ds_read_b32 v6, v5")
    a("v_and_b32 v7, 15, v1"); a("v_lshlrev_b32 v7, 4, v7"); a("s_lshl_b32 s54, s70, 10"); a(f"s_add_u32 s54, s54, {P_RC}"); a("v_add_u32 v7, s54, v7")
    for j in range(4): a(f"ds_read_b128 {vr(RC+4*j,4)}, v7 offset:{256*j}")
    a("v_lshrrev_b32 v8, 4, v1"); a("v_lshlrev_b32 v8, 4, v8"); a("s_mul_i32 s54, s71, 192"); a(f"s_add_u32 s54, s54, {P_CS}"); a("v_add_u32 v8, s54, v8")
    for m in range(2):
        for tt in range(3):
            a(f"ds_read_b128 {vr(CS+(m*3+tt)*4,4)}, v8 offset:{m*384 + tt*64}")
    for s in range(G2_NS): loadB(s)
    a("s_waitcnt lgkmcnt(0)")
    a(f"v_readfirstlane_b32 s{S_NONCE}, v6")
    P = 128
    for j in range(4):
        mreg, c1, sreg = RC+4*j, RC+4*j+1, RC+4*j+2
        for tt in range(3):
            g = accr(0, tt, j); u = accr(1, tt, j); cg = CS + tt*4; cu = CS + (3+tt)*4
            bc = lambda r: f"v[{r & ~1}:{(r & ~1)+1}]"
            def sel(r): return r & 1
            for h in range(2):
                a(f"v_pk_fma_f32 v[{g+2*h}:{g+2*h+1}], v[{cg+2*h}:{cg+2*h+1}], {bc(mreg)}, v[{g+2*h}:{g+2*h+1}] op_sel:[0,{sel(mreg)},0] op_sel_hi:[1,{sel(mreg)},1] neg_lo:[0,1,0] neg_hi:[0,1,0]")
            for h in range(2):
                a(f"v_pk_fma_f32 v[{u+2*h}:{u+2*h+1}], v[{cu+2*h}:{cu+2*h+1}], {bc(mreg)}, v[{u+2*h}:{u+2*h+1}] op_sel:[0,{sel(mreg)},0] op_sel_hi:[1,{sel(mreg)},1] neg_lo:[0,1,0] neg_hi:[0,1,0]")
            for h in range(2):
                a(f"v_pk_mul_f32 v[{g+2*h}:{g+2*h+1}], v[{g+2*h}:{g+2*h+1}], {bc(c1)} op_sel:[0,{sel(c1)}] op_sel_hi:[1,{sel(c1)}]")
            for i in range(4): a(f"v_exp_f32 v{g+i}, v{g+i}")
            for h in range(2):
                a(f"v_pk_fma_f32 v[{g+2*h}:{g+2*h+1}], v[{g+2*h}:{g+2*h+1}], {bc(sreg)}, {bc(sreg)} op_sel:[0,{sel(sreg)},{sel(sreg)}] op_sel_hi:[1,{sel(sreg)},{sel(sreg)}]")
            for i in range(4): a(f"v_rcp_f32 v{g+i}, v{g+i}")
            for h in range(2):
                a(f"v_pk_mul_f32 v[{g+2*h}:{g+2*h+1}], v[{g+2*h}:{g+2*h+1}], v[{u+2*h}:{u+2*h+1}]")
            for h in range(2):
                a(f"v_cvt_pk_bf16_f32 v{P+j*6+tt*2+h}, v{g+2*h}, v{g+2*h+1}")
    stp.mark()
    a(f"s_lshl_b32 s53, s{S_MT}, 3"); a("s_lshl_b32 s54, s70, 2"); a("s_add_u32 s53, s53, s54")
    a("s_mul_i32 s53, s53, 43"); a(f"s_add_u32 s53, s53, s{S_U0}"); a("s_lshl_b32 s53, s53, 10")
    a("v_lshlrev_b32 v3, 4, v1")
    a("s_cmp_eq_u32 s71, 0")
    a("s_cbranch_scc0 G1_FH1")
    for j in range(4):
        b = P + j*6
        a(f"s_add_u32 s54, s53, {j*43*1024}")
        a(f"buffer_store_dwordx4 {vr(b,4)}, v3, {sr(S_HF)}, s54 offen sc1")
        a(f"buffer_store_dwordx2 {vr(b+4,2)}, v3, {sr(S_HF)}, s54 offen offset:1024 sc1")
    a("s_branch G1_DONE")
    a.label("G1_FH1")
    for j in range(4):
        b = P + j*6
        a(f"s_add_u32 s54, s53, {j*43*1024}")
        a(f"buffer_store_dwordx2 {vr(b,2)}, v3, {sr(S_HF)}, s54 offen offset:1032 sc1")
        a(f"buffer_store_dwordx4 {vr(b+2,4)}, v3, {sr(S_HF)}, s54 offen offset:2048 sc1")
    a.label("G1_DONE")
    a("s_waitcnt vmcnt(0)")
    vm.q = []
    a(f"s_lshl_b32 s53, s{S_MT}, 1"); a("s_add_u32 s53, s53, s70"); a("s_lshl_b32 s53, s53, 5"); a(f"s_lshl_b32 s54, s{S_NG}, 1"); a("s_add_u32 s53, s53, s54"); a("s_add_u32 s53, s53, s71")
    a("s_lshl_b32 s53, s53, 2"); a(f"s_add_u32 s53, s53, {FL_FH}")
    a(f"v_mov_b32 v5, s{S_NONCE}"); a("v_mov_b32 v6, 0")
    a("s_mov_b64 exec, 1")
    a(f"buffer_store_dword v5, v6, {sr(S_FL)}, s53 offen sc1")
    a("s_mov_b64 exec, -1")
    stp.mark()
    a("v_and_b32 v5, 15, v1"); a("v_lshrrev_b32 v6, 4, v1")
    a("v_lshrrev_b32 v7, 2, v5"); a("v_lshl_add_u32 v7, v6, 2, v7")
    a("v_bfe_u32 v8, v7, 1, 2"); a("v_lshlrev_b32 v8, 5, v8"); a("v_lshl_add_u32 v8, v7, 7, v8")
    a("v_bfe_u32 v9, v5, 1, 1"); a("v_lshl_add_u32 v8, v9, 4, v8")
    a("v_and_b32 v9, 1, v5"); a("v_lshl_add_u32 v8, v9, 3, v8")
    a(f"v_add_u32 v8, s{S_RING}, v8")
    for nt in range(4): a(f"v_xor_b32 v{10+nt}, {nt<<5}, v8")
    a("v_and_b32 v14, 31, v1"); a("v_lshlrev_b32 v14, 2, v14")
    a(f"s_lshl_b32 s55, s{S_RB}, 7"); a(f"s_add_u32 s55, s55, {FL_FH}")
    poll(a, 14, 224, "s55", errcode=2)
    stp.mark()
    NSTEP = 11; AR = 80; ACC2 = 16; BF = [192, 208]
    def loadA(step):
        slot = step % G2_NS
        for j in range(4):
            a(f"s_add_u32 s54, s{S_AOFF}, {j*43*1024 + step*1024}")
            if step == 10:
                a(f"s_cmp_eq_u32 {gw}, 3"); a(f"s_cselect_b32 s54, {HF_BYTES}, s54")
            a(f"buffer_load_dwordx4 {vr(AR + slot*16 + 4*j, 4)}, v3, {sr(S_HF)}, s54 offen sc1"); vm.issue([f"A{step}"])
    for s in range(G2_NS): loadA(s)
    a(f"s_lshl_b32 s53, s{S_RB}, 16"); a(f"s_lshl_b32 s54, {gw}, 14"); a("s_add_u32 s53, s53, s54"); a(f"s_lshl_b32 s54, s{S_CB}, 7"); a(f"s_add_u32 s{S_XOFF}, s53, s54")
    a("v_lshrrev_b32 v15, 2, v1"); a("v_lshlrev_b32 v15, 10, v15"); a("v_and_b32 v9, 3, v1"); a("v_lshl_add_u32 v15, v9, 5, v15")
    a(f"buffer_load_dwordx4 v[224:227], v15, {sr(S_X)}, s{S_XOFF} offen"); vm.issue(["X"])
    a(f"buffer_load_dwordx4 v[228:231], v15, {sr(S_X)}, s{S_XOFF} offen offset:16"); vm.issue(["X"])
    lg = Trk(a, "lgkmcnt")
    def breads(step, st):
        slot = step % G2_NS; out = []
        for nt in range(4):
            for hf in range(2):
                r = BF[st] + 4*nt + 2*hf
                out.append((f"ds_read_b64_tr_b16 {vr(r,2)}, v{10+nt} offset:{slot*4096 + hf*2048}", vl(r,2)))
        return out
    for (t, r) in breads(0, 0): a(t); lg.issue(r)
    for step in range(NSTEP):
        st = step & 1; slot = step % G2_NS
        vm.need([f"A{step}"])
        rd = []
        n = 0; ri = 0
        for j in range(4):
            for nt in range(4):
                if n == 8 and step + 1 < NSTEP:
                    vm.need([f"B{step+1}"])
                    rd = breads(step + 1, st ^ 1)
                ar = AR + slot*16 + 4*j; br = BF[st] + 4*nt
                lg.need(vl(br, 4))
                c = "0" if step == 0 else vr(ACC2 + (j*4+nt)*4, 4)
                a(f"v_mfma_f32_16x16x32_bf16 {vr(ACC2 + (j*4+nt)*4, 4)}, {vr(ar,4)}, {vr(br,4)}, {c}")
                n += 1
                if ri < len(rd):
                    a(rd[ri][0]); lg.issue(rd[ri][1]); ri += 1
        while ri < len(rd):
            a(rd[ri][0]); lg.issue(rd[ri][1]); ri += 1
        if step + G2_NS < NSTEP:
            loadA(step + G2_NS); loadB(step + G2_NS)
    stp.mark()
    a(f"s_lshr_b32 s53, s{S_RB}, 4"); a("s_lshl_b32 s53, s53, 11"); a(f"s_lshl_b32 s54, s{S_CB}, 8"); a("s_add_u32 s55, s53, s54"); a(f"s_add_u32 s55, s55, {FL_FA}")
    a("v_lshlrev_b32 v14, 2, v1")
    poll(a, 14, 232, "s55", errcode=3)
    a(f"s_lshl_b32 s53, s{S_RB}, 3"); a(f"s_lshl_b32 s54, {gw}, 1"); a("s_add_u32 s53, s53, s54")
    a("s_lshl_b32 s53, s53, 13"); a(f"s_lshl_b32 s54, s{S_CB}, 10"); a("s_add_u32 s53, s53, s54")
    a("v_lshrrev_b32 v7, 1, v6"); a("v_lshlrev_b32 v7, 13, v7")
    a("v_lshl_add_u32 v7, v5, 4, v7"); a("v_and_b32 v8, 1, v6"); a("v_lshl_add_u32 v7, v8, 3, v7")
    for nt in range(4):
        a(f"buffer_load_dwordx2 {vr(80+2*nt,2)}, v7, {sr(S_AT)}, s53 offen offset:{nt*256} sc1")
    a("s_waitcnt lgkmcnt(0)")
    a("s_barrier")
    a(f"s_lshl_b32 s54, {gw}, 12"); a(f"s_add_u32 s54, s54, {P_G}")
    a("v_add_u32 v9, s54, v3")
    for j in range(4):
        for nt in range(4):
            a(f"ds_write_b128 v9, {vr(ACC2 + (j*4+nt)*4, 4)} offset:{j*16384 + nt*1024}")
    a("s_waitcnt lgkmcnt(0)")
    a("s_barrier")
    a(f"s_lshl_b32 s54, {gw}, 14"); a(f"s_add_u32 s54, s54, {P_G}")
    a("v_add_u32 v9, s54, v3")
    for src in range(4):
        for nt in range(4):
            a(f"ds_read_b128 {vr(96 + (src*4+nt)*4, 4)}, v9 offset:{src*4096 + nt*1024}")
    a("s_waitcnt lgkmcnt(0)")
    for nt in range(4):
        for i in range(4):
            r = 96 + nt*4 + i
            a(f"v_add_f32 v{r}, v{r}, v{r+16}"); a(f"v_add_f32 v{r+32}, v{r+32}, v{r+48}"); a(f"v_add_f32 v{r}, v{r}, v{r+32}")
    a("s_waitcnt vmcnt(0)")
    a("s_mov_b32 s53, 0x05040100"); a("s_mov_b32 s54, 0x07060302")
    a(f"s_mul_i32 s55, {gw}, 4352"); a(f"s_add_u32 s55, s55, {P_G + 65536}")
    a("v_mul_u32_u24 v9, 1088, v6"); a("v_lshl_add_u32 v9, v5, 2, v9"); a("v_add_u32 v9, s55, v9")
    for nt in range(4):
        r = 96 + nt*4
        a(f"v_cvt_pk_bf16_f32 v{r}, v{r}, v{r+1}"); a(f"v_cvt_pk_bf16_f32 v{r+2}, v{r+2}, v{r+3}")
        at0 = 80 + 2*nt
        a(f"v_perm_b32 v112, v{r}, v{at0}, s53"); a(f"v_perm_b32 v113, v{r}, v{at0}, s54")
        a(f"v_perm_b32 v114, v{r+2}, v{at0+1}, s53"); a(f"v_perm_b32 v115, v{r+2}, v{at0+1}, s54")
        for i in range(4):
            a(f"ds_write_b32 v9, v{112+i} offset:{i*272 + nt*64}")
    a("v_lshrrev_b32 v9, 2, v1"); a("v_mul_u32_u24 v9, 272, v9"); a("v_and_b32 v10, 3, v1"); a("v_lshl_add_u32 v9, v10, 6, v9"); a("v_add_u32 v9, s55, v9")
    a("s_waitcnt lgkmcnt(0)")
    for q in range(4): a(f"ds_read_b128 {vr(96+4*q,4)}, v9 offset:{16*q}")
    a("s_waitcnt lgkmcnt(0)")
    for q in range(8):
        e0 = 96 + 2*q; e1 = e0 + 1; xr = 224 + q
        a(f"v_lshlrev_b32 v112, 16, v{xr}"); a(f"v_and_b32 v113, 0xffff0000, v{xr}")
        a(f"v_lshlrev_b32 v114, 16, v{e0}"); a(f"v_lshlrev_b32 v115, 16, v{e1}")
        a(f"v_add_f32 v112, v112, v114"); a(f"v_add_f32 v113, v113, v115")
        a(f"v_cvt_pk_bf16_f32 v112, v112, v113")
        a(f"v_lshlrev_b32 v113, 16, v112"); a(f"v_and_b32 v112, 0xffff0000, v112")
        a(f"v_and_b32 v114, 0xffff0000, v{e0}"); a(f"v_and_b32 v115, 0xffff0000, v{e1}")
        a(f"v_add_f32 v113, v113, v114"); a(f"v_add_f32 v112, v112, v115")
        a(f"v_cvt_pk_bf16_f32 v{116+q}, v113, v112")
    a(f"buffer_store_dwordx4 v[116:119], v15, {sr(S_OUT)}, s{S_XOFF} offen")
    a(f"buffer_store_dwordx4 v[120:123], v15, {sr(S_OUT)}, s{S_XOFF} offen offset:16")
    if fc.STAMP:
        a("s_waitcnt vmcnt(0)")
        stp.mark()
        stp.flush()
    a("s_endpgm")

def s_path(a, stp):
    sw = f"s{S_RW}"
    a.label("S_PATH")
    a("v_lshrrev_b32 v3, 3, v1"); a("v_and_b32 v4, 7, v1"); a("v_lshrrev_b32 v5, 1, v3")
    a("v_xor_b32 v6, v4, v5"); a("v_xor_b32 v7, 4, v6"); a("v_lshlrev_b32 v3, 10, v3")
    a("v_lshl_add_u32 v10, v6, 4, v3"); a("v_lshl_add_u32 v11, v7, 4, v3")
    for t in range(3):
        a(f"v_add_u32 v3, {64*t}, v1")
        a("v_mul_u32_u24 v4, 5462, v3"); a("v_lshrrev_b32 v4, 16, v4")
        a("v_mul_u32_u24 v5, 12, v4"); a("v_sub_u32 v5, v3, v5")
        a("v_bfe_u32 v6, v4, 3, 1"); a("v_lshlrev_b32 v6, 1, v6"); a("v_xor_b32 v5, v5, v6")
        a("v_mul_u32_u24 v4, 2752, v4")
        a(f"v_lshl_add_u32 v{12+t}, v5, 4, v4")
    a(f"s_lshl_b32 s76, s{S_MT}, 17"); a(f"s_lshl_b32 s53, {sw}, 15"); a("s_add_u32 s76, s76, s53")
    a(f"s_mul_i32 s77, {sw}, 44032"); a(f"s_lshl_b32 s53, s{S_U0}, 6"); a("s_add_u32 s77, s77, s53")
    a(f"s_lshl_b32 s78, {sw}, 12")
    a(f"s_mul_i32 s79, {sw}, 3072"); a("s_add_u32 s79, s79, 16384")
    vm = Trk(a, "vmcnt")
    def dma_stage(stage):
        sb = (stage % 4) * SLOT
        for m in range(2):
            for t in range(3):
                a(f"s_add_u32 m0, s79, {sb + m*12288 + t*1024}")
                if t == 0 and m == 0: a(f"s_add_u32 s53, s77, {stage*64*2752}")
                a(f"buffer_load_dwordx4 v{12+t}, {sr(S_WG + 4*m)}, s53 offen lds"); vm.issue([f"st{stage}"])
        for t in range(4):
            a(f"s_add_u32 m0, s78, {sb + t*1024}")
            a(f"s_add_u32 s53, s76, {t*8192 + stage*128}")
            a(f"buffer_load_dwordx4 v{10 + (t&1)}, {sr(S_X)}, s53 offen lds"); vm.issue([f"st{stage}"])
    for s in range(3): dma_stage(s)
    a(f"s_cmp_lg_u32 {sw}, 0"); a("s_cbranch_scc1 S_NN")
    a("s_memrealtime s[54:55]"); a("s_waitcnt lgkmcnt(0)"); a("s_or_b32 s54, s54, 1")
    a("v_mov_b32 v24, s54"); a("v_mov_b32 v25, 0"); a("v_mov_b32 v26, 0")
    a("s_mov_b64 exec, 1")
    a(f"global_atomic_cmpswap v27, v26, v[24:25], s[{KP['dbg']}:{KP['dbg']+1}] sc0")
    a("s_mov_b64 exec, -1")
    a.label("S_NN")
    a("v_and_b32 v3, 15, v1"); a("v_lshrrev_b32 v4, 4, v1")
    a("v_and_b32 v5, 1, v4"); a("v_lshlrev_b32 v6, 3, v5"); a("v_lshrrev_b32 v7, 1, v4"); a("v_lshl_add_u32 v6, v7, 2, v6")
    a("v_lshrrev_b32 v7, 2, v3"); a("v_add_u32 v6, v6, v7"); a("v_mul_u32_u24 v6, 192, v6")
    a("v_and_b32 v7, 1, v3"); a("v_lshl_add_u32 v6, v7, 3, v6")
    a(f"s_lshr_b32 s53, {sw}, 1"); a("s_mul_i32 s53, s53, 12288"); a("s_add_u32 s53, s53, 16384"); a("v_add_u32 v6, s53, v6")
    a("v_bfe_u32 v7, v3, 1, 1"); a("v_lshlrev_b32 v5, 1, v5")
    a(f"s_and_b32 s53, {sw}, 1"); a("s_mul_i32 s53, s53, 6")
    for i in range(3):
        a("v_add_u32 v8, s53, v7"); a(f"v_add_u32 v8, {2*i}, v8"); a("v_xor_b32 v8, v8, v5")
        a(f"v_lshl_add_u32 v{16+i}, v8, 4, v6")
        a(f"v_mov_b32 v{20+i}, 0")
    a("s_mov_b32 s75, 0x3f803f80")
    vm.need(["st0"])
    a("s_barrier")
    stp.mark()
    lg = Trk(a, "lgkmcnt")
    def cs_stage(s):
        sb = (s % 4) * SLOT
        for i in range(3): a(f"v_add_u32 v{28+i}, {sb}, v{16+i}") if sb else a(f"v_mov_b32 v{28+i}, v{16+i}")
        for i in range(3):
            for q in range(4):
                r = 32 + (i*4+q)*2
                a(f"ds_read_b64_tr_b16 {vr(r,2)}, v{28+i} offset:{q*3072}"); lg.issue(vl(r,2))
        for i in range(3):
            for q in range(4):
                r = 32 + (i*4+q)*2
                lg.need(vl(r,2))
                a(f"v_dot2c_f32_bf16 v{20+i}, s75, v{r}"); a(f"v_dot2c_f32_bf16 v{20+i}, s75, v{r+1}")
    for s in range(8):
        if s == 0:
            a(f"s_lshl_b32 s53, {sw}, 8"); a(f"s_add_u32 s53, s53, {LT}")
            a("v_lshlrev_b32 v56, 2, v1"); a("v_add_u32 v56, s53, v56")
            for r in range(8):
                a(f"ds_read_b32 v{60+r}, v56 offset:{1024*r}"); lg.issue([f"v{60+r}"])
            a(f"v_mov_b32 v57, {LT + 8192}"); a("v_and_b32 v58, 7, v1"); a("v_lshl_add_u32 v57, v58, 3, v57")
            a("ds_read_b64 v[76:77], v57"); lg.issue(["v76", "v77"])
            a("s_mov_b32 s54, 0x05040100"); a("s_mov_b32 s55, 0x07060302")
            lg.need(vl(60, 8) + ["v76"])
            for i in range(4):
                a(f"v_perm_b32 v{68+i}, v{61+2*i}, v{60+2*i}, s54")
                a(f"v_perm_b32 v{72+i}, v{61+2*i}, v{60+2*i}, s55")
            a(f"s_lshl_b32 s53, s{S_MT}, 4"); a(f"s_add_u32 s53, s53, s{S_NG}"); a("s_lshl_b32 s53, s53, 13"); a(f"s_lshl_b32 s54, {sw}, 11"); a("s_add_u32 s53, s53, s54")
            a("v_lshlrev_b32 v56, 5, v1")
            a(f"buffer_store_dwordx4 v[68:71], v56, {sr(S_XT)}, s53 offen sc1"); vm.issue(["xt"])
            a(f"buffer_store_dwordx4 v[72:75], v56, {sr(S_XT)}, s53 offen offset:16 sc1"); vm.issue(["xt"])
            a(f"s_lshl_b32 s53, s{S_MT}, 4"); a(f"s_add_u32 s53, s53, s{S_NG}"); a("s_lshl_b32 s53, s53, 6"); a(f"s_add_u32 s53, s53, {FL_ST}")
            a("v_lshlrev_b32 v58, 3, v58")
            a(f"buffer_store_dwordx2 v[76:77], v58, {sr(S_FL)}, s53 offen sc1"); vm.issue(["xt"])
        cs_stage(s)
        if s == 3:
            a(f"s_cmp_lg_u32 {sw}, 0"); a("s_cbranch_scc1 S_NFX")
            a("v_cmp_eq_u32 vcc, 0, v27"); a("v_cndmask_b32 v27, v27, v24, vcc")
            a("s_nop 0")
            a(f"v_readfirstlane_b32 s{S_NONCE}, v27")
            a(f"s_lshl_b32 s53, s{S_MT}, 4"); a(f"s_add_u32 s53, s53, s{S_NG}"); a("s_lshl_b32 s53, s53, 2"); a(f"s_add_u32 s53, s53, {FL_FX}")
            a(f"v_mov_b32 v24, s{S_NONCE}"); a("v_mov_b32 v25, 0")
            a("s_mov_b64 exec, 1")
            a(f"buffer_store_dword v24, v25, {sr(S_FL)}, s53 offen sc1")
            a("s_mov_b64 exec, -1")
            a.label("S_NFX")
        if s == 6:
            a(f"s_cmp_lg_u32 {sw}, 0"); a("s_cbranch_scc1 S_NRC")
            a("v_and_b32 v56, 15, v1"); a("v_lshlrev_b32 v56, 2, v56")
            a(f"s_lshl_b32 s55, s{S_MT}, 6"); a(f"s_add_u32 s55, s55, {FL_FX}")
            poll(a, 56, 60, "s55", errcode=4)
            a(f"s_lshl_b32 s53, s{S_MT}, 10"); a(f"s_add_u32 s53, s53, {FL_ST}")
            a("v_lshlrev_b32 v56, 4, v1")
            a(f"buffer_load_dwordx4 v[60:63], v56, {sr(S_FL)}, s53 offen sc1")
            a("s_waitcnt vmcnt(0)")
            a("v_rcp_f32 v65, v61"); a("v_rcp_f32 v69, v63")
            a("v_mov_b32 v64, v60"); a("v_mov_b32 v66, v61"); a("v_mov_b32 v67, 0")
            a("v_mov_b32 v68, v62"); a("v_mov_b32 v70, v63"); a("v_mov_b32 v71, 0")
            a(f"v_mul_f32 v65, {NLOG2E:#x}, v65"); a(f"v_mul_f32 v69, {NLOG2E:#x}, v69")
            a("v_lshlrev_b32 v56, 5, v1")
            a(f"ds_write_b128 v56, v[64:67] offset:{P_RC}"); a(f"ds_write_b128 v56, v[68:71] offset:{P_RC + 16}")
            a(f"v_mov_b32 v60, s{S_NONCE}"); a("v_mov_b32 v61, 0"); a("v_mov_b32 v62, 0"); a("v_mov_b32 v63, 0")
            a(f"v_mov_b32 v56, {P_MISC}")
            a("ds_write_b128 v56, v[60:63]")
            a.label("S_NRC")
        if s == 7:
            for i in range(3):
                a(f"v_mov_b32 v24, v{20+i}")
                a(f"v_permlane32_swap_b32 v{20+i}, v24")
                a(f"v_add_f32 v{20+i}, v{20+i}, v24")
                a(f"v_mov_b32 v24, v{20+i}")
                a(f"v_permlane16_swap_b32 v{20+i}, v24")
                a(f"v_add_f32 v{20+i}, v{20+i}, v24")
            a(f"s_mul_i32 s53, {sw}, 192"); a(f"s_add_u32 s53, s53, {P_CS}")
            a("v_and_b32 v24, 15, v1"); a("v_lshlrev_b32 v24, 2, v24"); a("v_add_u32 v24, s53, v24")
            for i in range(3): a(f"ds_write_b32 v24, v{20+i} offset:{64*i}")
        if s + 1 < 8: vm.need([f"st{s+1}"])
        lg.q = []
        a("s_waitcnt lgkmcnt(0)")
        a("s_barrier")
        if s + 3 < 8: dma_stage(s + 3)
    stp.mark()
    a(f"v_mov_b32 v250, {P_MISC + 4}"); a("v_mov_b32 v253, 1")
    a(f"v_mov_b32 v5, {P_MISC}"); a("ds_read_b32 v6, v5")
    a(f"s_lshr_b32 s70, {sw}, 1"); a(f"s_and_b32 s71, {sw}, 1")
    CH, HF = "s70", "s71"
    srd(a, S_WG, KP['lar'], D * NM * 2); srd(a, S_WU, KP['aim'], D * NM * 2); srd(a, S_WD, KP['cr'], D * NM * 2); srd(a, S_X, KP['ci'], D * NM * 2)
    a(f"s_lshl_b32 s53, s{S_CP}, 9"); a(f"s_lshl_b32 s54, {sw}, 7"); a("s_add_u32 s53, s53, s54")
    a("v_lshlrev_b32 v3, 1, v1")
    a(f"buffer_load_ushort v4, v3, {sr(S_WG)}, s53 offen"); a(f"buffer_load_ushort v5, v3, {sr(S_WU)}, s53 offen")
    a(f"buffer_load_ushort v7, v3, {sr(S_X)}, s53 offen")
    a(f"s_lshl_b32 s54, s{S_CP}, 2")
    a(f"s_add_u32 s76, s{KP['ldt']}, s54"); a(f"s_addc_u32 s77, s{KP['ldt']+1}, 0")
    a(f"s_add_u32 s78, s{KP['dsk']}, s54"); a(f"s_addc_u32 s79, s{KP['dsk']+1}, 0")
    a("s_waitcnt lgkmcnt(0)")
    a(f"v_readfirstlane_b32 s{S_NONCE}, v6")
    a(f"buffer_load_ushort v6, v3, {sr(S_WD)}, s53 offen")
    a("s_load_dword s72, s[76:77], 0"); a("s_load_dword s73, s[78:79], 0")
    a("v_mov_b32 v12, 0"); a("v_mov_b32 v13, 0"); a("v_mov_b32 v14, 0"); a("v_mov_b32 v15, 0")
    a(f"s_cmp_lg_u32 {sw}, 0"); a("s_cbranch_scc1 SSM_NZ0")
    a("v_lshrrev_b32 v9, 5, v1"); a(f"v_mul_u32_u24 v9, {P_USTR}, v9"); a("v_and_b32 v10, 31, v1"); a("v_lshl_add_u32 v9, v10, 4, v9")
    a(f"ds_write_b128 v9, v[12:15] offset:{P_U0}")
    a.label("SSM_NZ0")
    a("s_waitcnt lgkmcnt(0)")
    a("s_lshl_b32 s53, s72, 16"); a("s_and_b32 s54, s72, 0xffff0000")
    a("s_lshl_b32 s76, s73, 16"); a("s_and_b32 s77, s73, 0xffff0000")
    a(f"s_cmp_eq_u32 {CH}, 0"); a("s_cselect_b32 s72, s53, s54"); a("s_cselect_b32 s73, s76, s77")
    a(f"s_mov_b32 s74, {LOG2E}")
    a("v_mov_b32 v9, s72"); a("v_mul_f32 v9, s74, v9"); a("v_exp_f32 v9, v9")
    round_bf16(a, 9, 9)
    a("s_waitcnt vmcnt(0)")
    a("v_lshlrev_b32 v4, 16, v4"); a("v_lshlrev_b32 v5, 16, v5"); a("v_lshlrev_b32 v6, 16, v6"); a("v_lshlrev_b32 v7, 16, v7")
    a("v_lshlrev_b32 v8, 4, v1")
    poll(a, 8, 196, f"{FL_FX}", nwords4=True, errcode=5)
    a(f"s_lshl_b32 s53, s{S_CP}, 1"); a(f"s_add_u32 s53, s53, {CH}"); a("s_lshl_b32 s53, s53, 4"); a(f"s_lshl_b32 s54, {HF}, 20"); a("s_add_u32 s53, s53, s54")
    a("v_lshlrev_b32 v8, 13, v1")
    a(f"buffer_load_dwordx4 v[200:203], v8, {sr(S_XT)}, s53 offen sc1")
    a(f"s_add_u32 s53, s53, {64*8192}")
    a(f"buffer_load_dwordx4 v[204:207], v8, {sr(S_XT)}, s53 offen sc1")
    stp.mark()
    a("v_mul_f32 v4, s74, v4"); a("v_exp_f32 v4, v4")
    round_bf16(a, 4, 4)
    a("v_mul_f32 v4, v4, v9"); a("v_mul_f32 v4, s74, v4")
    a("v_mul_f32 v5, v5, v9"); a(f"v_mul_f32 v5, {INV2PI:#x}, v5")
    a("v_add_f32 v9, v9, v9")
    a("v_mul_f32 v16, v6, v9"); a("v_mul_f32 v17, v7, v9")
    for (dst, mult) in ((18, 1.0), (20, 8.0), (22, 128.0)):
        a(f"v_mul_f32 v10, {fbits(mult):#x}, v4"); a(f"v_mul_f32 v11, {fbits(mult):#x}, v5")
        a("v_exp_f32 v10, -v10"); a("v_fract_f32 v11, v11")
        a(f"v_cos_f32 v{dst}, v11"); a(f"v_sin_f32 v{dst+1}, v11")
        a(f"v_mul_f32 v{dst}, v{dst}, v10"); a(f"v_mul_f32 v{dst+1}, v{dst+1}, v10")
    for s_ in cmul(24, 18, 18): a(s_)
    for s_ in cmul(26, 24, 24): a(s_)
    a(f"s_mul_i32 s76, {sw}, {P_GW}"); a(f"s_add_u32 s76, s76, {P_GEN}")
    a("v_lshlrev_b32 v28, 2, v1"); a("v_add_u32 v28, s76, v28")
    a("v_and_b32 v29, 15, v1"); a(f"v_mul_u32_u24 v29, {P_PITCH}, v29"); a("v_lshrrev_b32 v30, 4, v1"); a("v_lshl_add_u32 v29, v30, 4, v29"); a("v_add_u32 v29, s76, v29")
    def emit_row(pair, row, neg_im=False, tmp=None):
        n = "-" if neg_im else ""
        return [f"v_cvt_pk_bf16_f32 v{tmp}, v{pair}, {n}v{pair+1}", f"ds_write_b32 v28, v{tmp} offset:{row * P_PITCH}"]
    def rr(*streams):
        idx = [0] * len(streams)
        while any(idx[i] < len(s) for i, s in enumerate(streams)):
            for i, s in enumerate(streams):
                if idx[i] < len(s): a(s[idx[i]]); idx[i] += 1
    def Mreg(h): return 22 if h == 1 else (40 + 2 * h if h <= 7 else 30 + 2 * (h & 1))
    BFR = 72; AFR = 88; KACC = 136
    def kmfma(tt, with_b):
        a("s_waitcnt lgkmcnt(0)")
        if with_b:
            for ks in range(4): a(f"ds_read_b128 {vr(BFR+4*ks,4)}, v29 offset:{16*P_PITCH + 64*ks}")
        for ks in range(4): a(f"ds_read_b128 {vr(AFR+4*ks,4)}, v29 offset:{64*ks}")
        a("s_waitcnt lgkmcnt(0)")
        for ks in range(4):
            c = "0" if ks == 0 else vr(KACC+4*tt,4)
            a(f"v_mfma_f32_16x16x32_bf16 {vr(KACC+4*tt,4)}, {vr(AFR+4*ks,4)}, {vr(BFR+4*ks,4)}, {c}")
    sB = emit_row(16, 16, True, tmp=35); prev = 16
    for l in range(1, 16):
        d = 60 + 2 * (l & 1); sB += cmul(d, prev, 20) + emit_row(d, 16 + l, True, tmp=35); prev = d
    sC = ["v_mov_b32 v36, 0x3f80", "ds_write_b32 v28, v36 offset:0"] + emit_row(18, 1, tmp=36) + emit_row(24, 2, tmp=36); prev = 24
    for r in range(3, 8):
        d = 64 + 2 * (r & 1); sC += cmul(d, prev, 18) + emit_row(d, r, tmp=36); prev = d
    sE = emit_row(22, 8, tmp=34); prev = 22
    for r in range(1, 8):
        d = 68 + 2 * (r & 1); sE += cmul(d, prev, 18) + emit_row(d, 8 + r, tmp=34); prev = d
    sM = []
    for h in range(2, 8): sM += cmul(Mreg(h), Mreg(h - 1), 22)
    rr(sB, sC, sE, sM)
    kmfma(0, True)
    s1 = emit_row(Mreg(2), 0, tmp=34); prev = Mreg(2)
    for r in range(1, 4):
        d = 60 + 2 * (r & 1); s1 += cmul(d, prev, 24) + emit_row(d, r, tmp=34); prev = d
    s2 = emit_row(Mreg(3), 4, tmp=35); prev = Mreg(3)
    for r in range(1, 4):
        d = 64 + 2 * (r & 1); s2 += cmul(d, prev, 24) + emit_row(d, 4 + r, tmp=35); prev = d
    s3 = []
    for h in range(4, 8):
        d = 68 + 2 * (h & 1); s3 += emit_row(Mreg(h), 8 + 2*(h-4), tmp=36) + cmul(d, Mreg(h), 26) + emit_row(d, 9 + 2*(h-4), tmp=36)
    s4 = []; prevM = Mreg(7)
    for h in range(8, 17):
        d = 104 + 2 * (h - 8); s4 += cmul(d, prevM, 22); prevM = d
    rr(s1, s2, s3, s4)
    kmfma(1, False)
    s5 = []
    for h in range(8, 17): s5 += emit_row(104 + 2 * (h - 8), h - 8, tmp=34 + (h & 1))
    rr(s5)
    kmfma(2, False)
    stp.mark()
    a("v_lshlrev_b32 v30, 2, v1"); a("v_add_u32 v31, s76, v30")
    a(f"s_xor_b32 s53, {sw}, 1"); a(f"s_mul_i32 s53, s53, {P_GW}"); a(f"s_add_u32 s53, s53, {P_GEN}"); a("v_add_u32 v32, s53, v30")
    a("v_and_b32 v40, 15, v1"); a("v_lshlrev_b32 v40, 3, v40"); a("v_lshrrev_b32 v41, 4, v1")
    a("v_lshrrev_b32 v42, 1, v41"); a("v_lshlrev_b32 v42, 7, v42"); a("v_and_b32 v43, 1, v41"); a("v_lshl_add_u32 v42, v43, 2, v42"); a("v_add_u32 v42, v42, v40")
    a("v_cmp_gt_u32 vcc, 2, v41")
    a("v_lshlrev_b32 v43, 7, v41"); a("v_add_u32 v43, 256, v43"); a("v_lshlrev_b32 v44, 8, v41")
    a("v_cndmask_b32 v43, v44, v43, vcc"); a("v_add_u32 v43, v43, v40")
    for i, (x, y) in enumerate(((2, 4), (4, 128), (6, 132))):
        a(f"v_mov_b32 v{48+i}, {y}"); a(f"v_mov_b32 v{52+i}, {x}"); a(f"v_cndmask_b32 v{48+i}, v{48+i}, v{52+i}, vcc")
    a("v_lshlrev_b32 v44, 9, v41"); a("v_add_u32 v44, 1024, v44"); a("v_add_u32 v44, v44, v40")
    a(f"s_lshl_b32 s77, {CH}, 1"); a(f"s_add_u32 s77, s77, {P_TABOFF & 0xffffffff:#x}")
    def finalize(send, keep, plist, lab, k):
        for kk, r in enumerate(send): a(f"ds_write_b32 v31, v{KACC+r} offset:{256*kk}")
        for kk, code in enumerate(plist):
            for c in code: a(c.replace("PD", f"v{64+kk}"))
        for kk in range(6):
            a(f"v_cvt_f32_u32 v{64+kk}, v{64+kk}")
            a(f"v_lshrrev_b32 v{64+kk}, 14, v{64+kk}")
            a(f"v_max_u32 v{64+kk}, {4*0x3F7F}, v{64+kk}")
        return
    a(f"s_cmp_eq_u32 {HF}, 0"); a("s_cbranch_scc0 SSM_HF1a")
    p_hf0 = [[f"v_add_u32 PD, {i}, v42"] for i in range(4)] + [["v_mov_b32 PD, v43"], ["v_add_u32 PD, v43, v48"]]
    finalize(range(6, 12), range(0, 6), p_hf0, "a", 1)
    for kk in range(6):
        a(f"v_add_u32 v{64+kk}, s77, v{64+kk}"); a(f"v_mov_b32 v{56+kk}, v{KACC+kk}")
    a("s_branch SSM_HFXa")
    a.label("SSM_HF1a")
    p_hf1 = [["v_add_u32 PD, v43, v49"], ["v_add_u32 PD, v43, v50"]] + [[f"v_add_u32 PD, {128*i}, v44"] for i in range(4)]
    finalize(range(0, 6), range(6, 12), p_hf1, "b", 1)
    a(f"v_mov_b32 v70, {P_MISC + 32}")
    a(f"s_mov_b32 s53, {0x45000000 >> 14}")
    for kk in range(6):
        if kk >= 2: a(f"v_cmp_ge_u32 vcc, s53, v{64+kk}")
        a(f"v_add_u32 v{64+kk}, s77, v{64+kk}")
        if kk >= 2: a(f"v_cndmask_b32 v{64+kk}, v70, v{64+kk}, vcc")
        a(f"v_mov_b32 v{56+kk}, v{KACC+6+kk}")
    a.label("SSM_HFXa")
    sbar(a, 250, 252, 1)
    for kk in range(6): a(f"ds_read_b32 v{72+kk}, v32 offset:{256*kk}")
    a("s_waitcnt lgkmcnt(0)")
    for kk in range(6):
        a(f"v_add_f32 v{56+kk}, v{56+kk}, v{72+kk}")
        a(f"v_cvt_pk_bf16_f32 v{56+kk}, v{56+kk}, v{56+kk}")
    assert P_GEN + 3 * P_GW + 1536 <= P_TAB
    for kk in range(6): a(f"ds_write_b16 v{64+kk}, v{56+kk}")
    sbar(a, 250, 252, 2)
    stp.mark()
    a(f"s_mul_i32 s53, {CH}, {P_USTR}"); a(f"s_lshl_b32 s54, {HF}, 11"); a("s_add_u32 s53, s53, s54"); a(f"s_add_u32 s53, s53, {P_U0 + 512}")
    a("v_lshlrev_b32 v39, 4, v1"); a("v_add_u32 v39, s53, v39")
    a("s_waitcnt vmcnt(0)")
    a("ds_write_b128 v39, v[200:203]"); a("ds_write_b128 v39, v[204:207] offset:1024")
    a(f"s_lshl_b32 s53, {sw}, 6"); a("v_add_u32 v38, s53, v1")
    a("v_lshlrev_b32 v40, 3, v38"); a("v_sub_u32 v40, 2047, v40"); a("v_cvt_f32_i32 v40, v40")
    for e in range(1, 12): a(f"v_subrev_f32 v{40+e}, {fbits(float(e)):#x}, v40")
    for k in range(6): a(f"v_cvt_pk_bf16_f32 v{52+k}, |v{40+2*k}|, |v{41+2*k}|")
    for e in range(11):
        sel = "WORD_0" if e % 2 == 0 else "WORD_1"
        a(f"v_lshlrev_b32_sdwa v{60+e}, 2, v{52+e//2} dst_sel:DWORD dst_unused:UNUSED_PAD src0_sel:DWORD src1_sel:{sel}")
    a(f"v_max_u32 v67, {4*0x3F7F}, v67")
    for e in range(11): a(f"v_add_u32 v{60+e}, {P_TABOFF & 0xffffffff:#x}, v{60+e}")
    for e in range(11): a(f"ds_read_b32 v{72+e}, v{60+e}")
    a("v_cmp_ne_u32 vcc, 255, v38")
    a("s_mov_b32 s54, 0x05040100"); a("s_mov_b32 s55, 0x07060302")
    a("v_lshlrev_b32 v71, 4, v38")
    a("s_waitcnt lgkmcnt(0)")
    for e in (8, 9, 10): a(f"v_cndmask_b32 v{72+e}, 0, v{72+e}, vcc")
    for ch in range(2):
        for sg in range(4):
            b = 84 + 16*ch + 4*sg
            for k in range(4): a(f"v_perm_b32 v{b+k}, v{72+2*k+sg+1}, v{72+2*k+sg}, s{54+ch}")
            a(f"ds_write_b128 v71, {vr(b,4)} offset:{P_KW + ch*P_KCH + sg*P_KCP}")
    a(f"s_cmp_lg_u32 {sw}, 1"); a("s_cbranch_scc1 SSM_NZ1")
    a("v_bfe_u32 v9, v1, 3, 1"); a(f"v_mul_u32_u24 v9, {P_KCH}, v9"); a("v_bfe_u32 v10, v1, 1, 2"); a(f"v_mul_u32_u24 v10, {P_KCP}, v10")
    a("v_add_u32 v9, v9, v10"); a("v_and_b32 v10, 1, v1"); a("v_lshl_add_u32 v9, v10, 4, v9")
    a(f"ds_write_b128 v9, v[12:15] offset:{P_KW + 4096}")
    a.label("SSM_NZ1")
    sbar(a, 250, 252, 3)
    stp.mark()
    a("v_and_b32 v41, 15, v1"); a("v_lshrrev_b32 v42, 4, v1")
    a("v_sub_u32 v43, 3, v41"); a("v_and_b32 v43, 3, v43")
    a(f"v_mul_u32_u24 v40, {P_KCP - 2}, v43"); a("v_lshlrev_b32 v44, 1, v41"); a("v_sub_u32 v40, v40, v44"); a("v_lshl_add_u32 v40, v42, 4, v40")
    a(f"s_mul_i32 s53, {CH}, {P_KCH}"); a(f"s_lshl_b32 s54, {HF}, 8"); a("s_sub_u32 s53, s53, s54"); a(f"s_add_u32 s53, s53, {P_KW + 2*2031 - 64*63}")
    a("v_add_u32 v40, s53, v40")
    a("v_lshlrev_b32 v45, 5, v41"); a("v_lshl_add_u32 v45, v42, 4, v45")
    a(f"s_mul_i32 s53, {CH}, {P_USTR}"); a("s_sub_u32 s53, s53, s54"); a(f"s_add_u32 s53, s53, {P_U0 + 480 - 448 + 256}")
    a("v_add_u32 v45, s53, v45")
    ACC = 48; BF = [80, 112]; AF = 144
    lg = Trk(a, "lgkmcnt")
    def loadB(rr_, st):
        for tp in range(8):
            r = BF[st] + 4*tp
            a(f"ds_read_b128 {vr(r,4)}, v45 offset:{64*(8*tp - rr_ + 7) - 256 + 0}") if 64*(8*tp - rr_ + 7) - 256 >= 0 else None
            lg.issue(vl(r,4))
    def loadA(rr_, q, slot):
        r = AF + 4*slot; off = 64*(63 - 8*q - rr_)
        a(f"ds_read_b64 {vr(r,2)}, v40 offset:{off}"); lg.issue(vl(r,2))
        a(f"ds_read_b64 {vr(r+2,2)}, v40 offset:{off+8}"); lg.issue(vl(r+2,2))
    seq = [(rr_, q) for rr_ in range(4) for q in range(8)]
    loadA(0, 0, 0); loadA(0, 1, 1); loadB(0, 0); loadA(0, 2, 2)
    first = [True]*8
    for n, (rr_, q) in enumerate(seq):
        slot = n % 4; st = rr_ & 1
        if n + 3 < len(seq): loadA(seq[n+3][0], seq[n+3][1], (n+3) % 4)
        if q == 2 and rr_ < 3: loadB(rr_ + 1, st ^ 1)
        ar = AF + 4*slot
        for t in range(q, 8):
            br = BF[st] + 4*(t - q)
            lg.need(vl(ar,4) + vl(br,4))
            c = "0" if first[t] else vr(ACC+4*t,4); first[t] = False
            a(f"v_mfma_f32_16x16x32_bf16 {vr(ACC+4*t,4)}, {vr(ar,4)}, {vr(br,4)}, {c}")
    stp.mark()
    sbar(a, 250, 252, 4)
    a(f"s_lshl_b32 s53, {sw}, 12"); a(f"s_add_u32 s53, s53, {P_KW}")
    a(f"s_xor_b32 s54, {sw}, 1"); a("s_lshl_b32 s54, s54, 12"); a(f"s_add_u32 s54, s54, {P_KW}")
    a("v_lshlrev_b32 v46, 4, v1"); a("v_add_u32 v47, s54, v46"); a("v_add_u32 v46, s53, v46")
    a("v_lshlrev_b32 v144, 1, v41"); a("v_lshrrev_b32 v145, 1, v42"); a("v_add_u32 v144, v144, v145"); a("v_lshlrev_b32 v144, 13, v144")
    a("v_and_b32 v145, 1, v42"); a("v_lshl_add_u32 v144, v145, 3, v144")
    a(f"s_lshl_b32 s53, s{S_CP}, 1"); a(f"s_add_u32 s53, s53, {CH}"); a("s_lshl_b32 s53, s53, 4"); a(f"s_lshl_b32 s54, {HF}, 20"); a("s_add_u32 s76, s53, s54")
    a("v_lshlrev_b32 v146, 5, v41"); a("v_lshl_add_u32 v146, v42, 3, v146")
    a(f"s_mul_i32 s53, {CH}, {P_USTR}"); a(f"s_lshl_b32 s54, {HF}, 11"); a("s_add_u32 s53, s53, s54"); a(f"s_add_u32 s53, s53, {P_U0 + 512}")
    a("v_add_u32 v146, s53, v146")
    a(f"s_cmp_eq_u32 {HF}, 0"); a("s_cbranch_scc0 SSM_X1")
    for k, t in enumerate(range(4, 8)): a(f"ds_write_b128 v46, {vr(ACC+4*t,4)} offset:{1024*k}")
    for t in range(4):
        for i in range(4): a(f"v_mov_b32 v{160+4*t+i}, v{ACC+4*t+i}")
    a("s_branch SSM_X2")
    a.label("SSM_X1")
    for k, t in enumerate(range(0, 4)): a(f"ds_write_b128 v46, {vr(ACC+4*t,4)} offset:{1024*k}")
    for t in range(4):
        for i in range(4): a(f"v_mov_b32 v{160+4*t+i}, v{ACC+16+4*t+i}")
    a.label("SSM_X2")
    sbar(a, 250, 252, 5)
    for k in range(4):
        a(f"ds_read_b128 {vr(80+4*k,4)}, v47 offset:{1024*k}")
        a(f"ds_read_b64 {vr(96+2*k,2)}, v146 offset:{512*k}")
    a("s_waitcnt lgkmcnt(0)")
    for k in range(4):
        y = 160 + 4*k
        for i in range(4): a(f"v_add_f32 v{y+i}, v{y+i}, v{80+4*k+i}")
        a(f"v_cvt_pk_bf16_f32 v104, v{y}, v{y+1}"); a(f"v_cvt_pk_bf16_f32 v105, v{y+2}, v{y+3}")
        for j in range(2):
            u = 96 + 2*k + j
            a(f"v_lshlrev_b32 v106, 16, v{u}"); a(f"v_and_b32 v107, 0xffff0000, v{u}")
            a(f"v_mul_f32 v106, s73, v106"); a(f"v_mul_f32 v107, s73, v107")
            a(f"v_cvt_pk_bf16_f32 v108, v106, v107")
            a(f"v_lshlrev_b32 v106, 16, v108"); a(f"v_and_b32 v107, 0xffff0000, v108")
            a(f"v_lshlrev_b32 v109, 16, v{104+j}"); a(f"v_and_b32 v110, 0xffff0000, v{104+j}")
            a(f"v_add_f32 v106, v106, v109"); a(f"v_add_f32 v107, v107, v110")
            a(f"v_cvt_pk_bf16_f32 v{112+2*k+j}, v106, v107")
        a(f"s_add_u32 s53, s76, {k * 32 * 8192}")
        a(f"buffer_store_dwordx2 {vr(112+2*k,2)}, v144, {sr(S_AT)}, s53 offen sc1")
    a("s_waitcnt vmcnt(0)")
    a(f"s_lshl_b32 s53, {HF}, 9"); a(f"s_lshl_b32 s54, s{S_CP}, 1"); a("s_add_u32 s53, s53, s54"); a(f"s_add_u32 s53, s53, {CH}"); a("s_lshl_b32 s53, s53, 2"); a(f"s_add_u32 s53, s53, {FL_FA}")
    a(f"v_mov_b32 v5, s{S_NONCE}"); a("v_mov_b32 v6, 0")
    a("s_mov_b64 exec, 1")
    a(f"buffer_store_dword v5, v6, {sr(S_FL)}, s53 offen sc1")
    a("s_mov_b64 exec, -1")
    if fc.STAMP:
        a("s_waitcnt vmcnt(0)")
        stp.mark()
        stp.flush()
    a("s_endpgm")

def gen_fused(name):
    a = Asm()
    stp = Stamps(a)
    prologue(a, stp)
    g = stp.fork(); s = stp.fork()
    g_path(a, g)
    s_path(a, s)
    a.label("K_END")
    a("s_endpgm")
    return kernel_head(name) + a.finish() + kernel_desc(name, 256)

if __name__ == "__main__":
    if "--stamp" in sys.argv:
        fc.STAMP = True; sys.argv.remove("--stamp")
    hdr = open("cdna_kernels/" + NAME + ".s.ref").read().split("; Override")[0]
    kn = NAME + "_kernel"
    s = hdr + f"; @launch kernel={kn} grid=(256,1,1) block=(512,1,1) lds={LDS_TOTAL}\n"
    s += '.amdgcn_target "amdgcn-amd-amdhsa--gfx950"\n.text\n' + gen_fused(kn)
    open(sys.argv[1], "w").write(s)
```

```python
from asmlib import *
import struct
NAME = "parallel_sum__ssm_conv_s4d__glu_gated_glu__prompt"
L, D, NM, F = 2048, 512, 128, 1376
W_XT = 0
W_AT = 2 << 20
W_HF = 4 << 20
HF_BYTES = 128 * 43 * 1024
W_FL = 10 << 20
FL_FX = 0
FL_FH = 4096
FL_FA = 8192
FL_ST = 16384
FL_BYTES = 65536
LOG2E = 0x3fb8aa3b
NLOG2E = 0xbfb8aa3b
INV2PI = 0x3e22f983
EPS = 0x3727c5ac
def fbits(x): return struct.unpack("<I", struct.pack("<f", x))[0]

S_X, S_WG, S_WU, S_WD, S_HF, S_XT, S_AT, S_OUT, S_FL = 8, 12, 16, 20, 24, 28, 32, 36, 40
S_WAVE, S_RW, S_MT, S_NG, S_U0, S_NONCE, S_CP, S_RB, S_CB = 44, 45, 46, 47, 48, 49, 50, 51, 52
KP = dict(x=56, lar=58, aim=60, cr=62, ci=64, ldt=66, dsk=68, bx=70, wg=72, wu=74, wd=76, out=78, dbg=80, ws=82)

STAMP = False
DBGSTAMP = False
DBGWG = 0
W_STAMP = 64 << 20
_uid = [0]
class Stamps:
    def __init__(self, a):
        self.a = a; self.n = 0
    def mark(self, first=False):
        if not STAMP: return
        a = self.a
        a("s_waitcnt lgkmcnt(0)")
        a("s_memtime s[84:85]")
        a("s_waitcnt lgkmcnt(0)")
        a(f"s_mov_b32 s{86 + self.n}, s84")
        if first:
            a("s_memrealtime s[84:85]"); a("s_waitcnt lgkmcnt(0)"); a("s_mov_b32 s98, s84")
        self.n += 1
        assert self.n <= 12
    def fork(self):
        s = Stamps(self.a); s.n = self.n; return s
    def flush(self):
        if not STAMP: return
        a = self.a
        if DBGSTAMP:
            _uid[0] += 1
            lab = f"DS{_uid[0]}"
            a(f"s_cmp_lg_u32 s2, {DBGWG}"); a(f"s_cbranch_scc1 {lab}")
            a(f"s_and_b32 s99, s{S_WAVE}, 3"); a("s_cmp_lg_u32 s99, 0"); a(f"s_cbranch_scc1 {lab}")
            a(f"s_lshr_b32 s99, s{S_WAVE}, 2"); a("s_mul_i32 s99, s99, 28"); a("s_add_u32 s99, s99, 8")
            a("v_mov_b32 v0, s99")
            for i in range(1, min(self.n, 8)):
                a(f"s_sub_u32 s99, s{86+i}, s{86+i-1}") if not (self.n > 8 and i == 7) else a(f"s_sub_u32 s99, s{86+self.n-1}, s{86+i-1}")
                a("v_mov_b32 v1, s99")
                a(f"global_store_dword v0, v1, s[{KP['dbg']}:{KP['dbg']+1}] offset:{4*(i-1)}")
            a("s_waitcnt vmcnt(0)")
            a.label(lab)
            return
        a(f"s_add_u32 s100, s{KP['ws']}, {W_STAMP}")
        a(f"s_addc_u32 s101, s{KP['ws']+1}, 0")
        a(f"s_lshl_b32 s99, s2, 3")
        a(f"s_add_u32 s99, s99, s{S_WAVE}")
        a(f"s_lshl_b32 s99, s99, 6")
        a("s_add_u32 s100, s100, s99"); a("s_addc_u32 s101, s101, 0")
        a("s_memrealtime s[84:85]"); a("s_waitcnt lgkmcnt(0)")
        a("v_mov_b32 v0, 0")
        a("v_mov_b32 v1, s98"); a("global_store_dword v0, v1, s[100:101] offset:56")
        a("v_mov_b32 v1, s84"); a("global_store_dword v0, v1, s[100:101] offset:60")
        for i in range(self.n):
            a(f"v_mov_b32 v1, s{86+i}")
            a(f"global_store_dword v0, v1, s[100:101] offset:{4*i}")
        a("s_waitcnt vmcnt(0)")

def srd(a, s, ptr, nbytes, add=0):
    if add:
        a(f"s_add_u32 s{s}, s{ptr}, {add}")
        a(f"s_addc_u32 s{s+1}, s{ptr+1}, 0")
    else:
        a(f"s_mov_b32 s{s}, s{ptr}")
        a(f"s_mov_b32 s{s+1}, s{ptr+1}")
    a(f"s_mov_b32 s{s+2}, {nbytes}")
    a(f"s_mov_b32 s{s+3}, 0x20000")
def sr(s): return f"s[{s}:{s+3}]"

def round_bf16(a, dst, src):
    a(f"v_cvt_pk_bf16_f32 v{dst}, v{src}, v{src}")
    a(f"v_and_b32 v{dst}, 0xffff0000, v{dst}")

def wave_sum(a, regs, tmp_s):
    for pat in ("quad_perm:[1,0,3,2]", "quad_perm:[2,3,0,1]", "row_half_mirror", "row_mirror"):
        for r in regs:
            a(f"v_add_f32_dpp v{r}, v{r}, v{r} {pat} row_mask:0xf bank_mask:0xf")
    for pat, rm in (("row_bcast:15", "0xa"), ("row_bcast:31", "0xc")):
        for r in regs:
            a(f"v_add_f32_dpp v{r}, v{r}, v{r} {pat} row_mask:{rm} bank_mask:0xf")
    for r, s in zip(regs, tmp_s):
        a(f"v_readlane_b32 s{s}, v{r}, 63")

SPIN_MAX = 200000
def poll(a, voff, vtmp, soff, nwords4=False, errcode=1):
    _uid[0] += 1
    lab = f"POLL{_uid[0]}"
    a(f"s_mov_b32 s53, {SPIN_MAX}")
    a.label(lab)
    if nwords4:
        a(f"buffer_load_dwordx4 v[{vtmp}:{vtmp+3}], v{voff}, {sr(S_FL)}, {soff} offen sc1")
        a("s_waitcnt vmcnt(0)")
        a(f"v_xor_b32 v{vtmp}, s{S_NONCE}, v{vtmp}")
        for i in range(1, 4):
            a(f"v_xor_b32 v{vtmp+i}, s{S_NONCE}, v{vtmp+i}")
        a(f"v_or_b32 v{vtmp}, v{vtmp}, v{vtmp+1}"); a(f"v_or_b32 v{vtmp+2}, v{vtmp+2}, v{vtmp+3}"); a(f"v_or_b32 v{vtmp}, v{vtmp}, v{vtmp+2}")
        a(f"v_cmp_eq_u32 vcc, 0, v{vtmp}")
    else:
        a(f"buffer_load_dword v{vtmp}, v{voff}, {sr(S_FL)}, {soff} offen sc1")
        a("s_waitcnt vmcnt(0)")
        a(f"v_cmp_eq_u32 vcc, s{S_NONCE}, v{vtmp}")
    a("s_cmp_eq_u64 vcc, -1")
    a(f"s_cbranch_scc1 {lab}_OK")
    a("s_sleep 1")
    a("s_sub_u32 s53, s53, 1")
    a("s_cmp_lg_u32 s53, 0")
    a(f"s_cbranch_scc1 {lab}")
    a("v_mov_b32 v%d, %d" % (vtmp, errcode))
    a("v_mov_b32 v%d, 0" % (vtmp + 1))
    a(f"global_store_dword v{vtmp+1}, v{vtmp}, s[{KP['dbg']}:{KP['dbg']+1}] offset:4")
    a.label(f"{lab}_OK")

def sbar(a, vaddr, vtmp, k, nw=4):
    _uid[0] += 1
    lab = f"SBAR{_uid[0]}"
    a("s_waitcnt lgkmcnt(0)")
    a("s_mov_b64 exec, 1")
    a(f"ds_add_u32 v{vaddr}, v{vtmp+1}")
    a("s_mov_b64 exec, -1")
    a(f"s_mov_b32 s53, {SPIN_MAX}")
    a.label(lab)
    a(f"ds_read_b32 v{vtmp}, v{vaddr}")
    a("s_waitcnt lgkmcnt(0)")
    a(f"v_readfirstlane_b32 s54, v{vtmp}")
    a(f"s_cmp_ge_u32 s54, {nw * k}")
    a(f"s_cbranch_scc1 {lab}_OK")
    a("s_sub_u32 s53, s53, 1")
    a("s_cmp_lg_u32 s53, 0")
    a(f"s_cbranch_scc1 {lab}")
    a.label(f"{lab}_OK")
```

```python
import sys
from fused_common import *
import fused_common as fc

SLOT = 40960
LT = 3 * SLOT
P_U0 = 0; P_USTR = 4608
P_KW = 9216; P_KCH = 16640; P_KCP = 4160
P_TAB = 42496
P_TABOFF = P_TAB - 4 * 0x3F7F
P_CS = 48384
P_RC = 49152
P_MISC = 51200
P_G = 53248
G2_NS = 6
G2_WRING = G2_NS * 4096
P_GEN = P_KW; P_GW = 8704; P_PITCH = 272
LDS_TOTAL = 163840
DELAY = 0

def cmul(d, z, w):
    return [f"v_pk_mul_f32 v[{d}:{d+1}], v[{z}:{z+1}], v[{w}:{w+1}] op_sel:[0,0] op_sel_hi:[1,0]",
            f"v_pk_fma_f32 v[{d}:{d+1}], v[{z}:{z+1}], v[{w}:{w+1}], v[{d}:{d+1}] op_sel:[1,1,0] op_sel_hi:[0,1,1] neg_lo:[0,1,0]"]

def prologue(a, stp):
    a("s_cmp_ge_u32 s2, 256")
    a("s_cbranch_scc1 K_END")
    a("s_load_dwordx16 s[56:71], s[0:1], 0")
    a("s_load_dwordx8 s[72:79], s[0:1], 64")
    a("s_load_dwordx4 s[80:83], s[0:1], 96")
    stp.mark(first=False) if False else None
    if DELAY:
        a("s_memtime s[4:5]"); a("s_waitcnt lgkmcnt(0)"); a(f"s_add_u32 s4, s4, {DELAY}")
        a.label("DLY"); a("s_memtime s[6:7]"); a("s_waitcnt lgkmcnt(0)"); a("s_sub_u32 s3, s6, s4"); a("s_cmp_lt_i32 s3, 0"); a("s_cbranch_scc1 DLY")
    a("v_and_b32 v1, 63, v0")
    a("v_lshrrev_b32 v2, 6, v0")
    a("s_nop 0")
    a(f"v_readfirstlane_b32 s{S_WAVE}, v2")
    a(f"s_and_b32 s{S_RW}, s{S_WAVE}, 3")
    a("s_and_b32 s53, s2, 7"); a("s_lshr_b32 s54, s2, 3")
    a(f"s_and_b32 s{S_MT}, s53, 1"); a(f"s_lshl_b32 s{S_MT}, s{S_MT}, 3"); a("s_and_b32 s55, s54, 7"); a(f"s_add_u32 s{S_MT}, s{S_MT}, s55")
    a(f"s_lshr_b32 s{S_NG}, s53, 1"); a(f"s_lshl_b32 s{S_NG}, s{S_NG}, 2"); a("s_lshr_b32 s55, s54, 3"); a(f"s_add_u32 s{S_NG}, s{S_NG}, s55")
    a(f"s_lshl_b32 s{S_U0}, s{S_NG}, 3"); a(f"s_mul_i32 s{S_U0}, s{S_U0}, 21846"); a(f"s_lshr_b32 s{S_U0}, s{S_U0}, 16")
    a(f"s_lshl_b32 s{S_CP}, s53, 5"); a(f"s_add_u32 s{S_CP}, s{S_CP}, s54")
    a(f"s_lshl_b32 s{S_RB}, s53, 2"); a("s_lshr_b32 s55, s54, 3"); a(f"s_add_u32 s{S_RB}, s{S_RB}, s55")
    a(f"s_and_b32 s{S_CB}, s54, 7")
    a("s_waitcnt lgkmcnt(0)")
    srd(a, S_X, KP['x'], L * D * 2)
    srd(a, S_WG, KP['wg'], D * F * 2); srd(a, S_WU, KP['wu'], D * F * 2); srd(a, S_WD, KP['wd'], F * D * 2)
    srd(a, S_HF, KP['ws'], HF_BYTES, W_HF); srd(a, S_XT, KP['ws'], 2 << 20, W_XT); srd(a, S_AT, KP['ws'], 2 << 20, W_AT)
    srd(a, S_OUT, KP['out'], L * D * 2); srd(a, S_FL, KP['ws'], FL_BYTES, W_FL)
    a(f"s_mov_b32 s{S_NONCE}, 0")
    stp.mark(first=True)
    a(f"s_cmp_ge_u32 s{S_WAVE}, 4")
    a("s_cbranch_scc1 S_PATH")

def g_path(a, stp):
    gw = f"s{S_RW}"
    a(f"s_lshl_b32 s53, s{S_MT}, 7"); a(f"s_lshl_b32 s54, s{S_NG}, 3"); a("s_add_u32 s53, s53, s54"); a(f"s_lshl_b32 s54, {gw}, 1"); a("s_add_u32 s53, s53, s54")
    a("s_lshl_b32 s53, s53, 10")
    a("v_lshlrev_b32 v3, 4, v1")
    a(f"buffer_load_dwordx4 v[4:7], v3, {sr(S_X)}, s53 offen")
    a(f"buffer_load_dwordx4 v[8:11], v3, {sr(S_X)}, s53 offen offset:1024")
    a(f"s_lshr_b32 s70, {gw}, 1"); a(f"s_and_b32 s71, {gw}, 1")
    a("v_and_b32 v33, 15, v1"); a("v_lshrrev_b32 v34, 4, v1")
    a("v_lshrrev_b32 v35, 1, v33"); a("v_xor_b32 v35, v35, v34"); a("v_lshlrev_b32 v35, 4, v35")
    a("v_lshl_add_u32 v35, v33, 7, v35")
    a("s_lshl_b32 s54, s70, 13")
    a("v_add_u32 v56, s54, v35")
    a("v_xor_b32 v57, 64, v56")
    a("v_lshrrev_b32 v35, 2, v33"); a("v_lshl_add_u32 v35, v34, 3, v35"); a("v_mul_u32_u24 v35, 192, v35")
    a("v_and_b32 v36, 1, v33"); a("v_lshl_add_u32 v35, v36, 3, v35"); a("v_add_u32 v35, 16384, v35")
    a("v_bfe_u32 v36, v33, 1, 1")
    a("v_and_b32 v37, 1, v34"); a("v_lshlrev_b32 v37, 1, v37")
    a("s_mul_i32 s54, s71, 6")
    for tt in range(3):
        a(f"v_add_u32 v38, s54, v36"); a(f"v_add_u32 v38, {2*tt}, v38"); a("v_xor_b32 v38, v38, v37")
        a(f"v_lshl_add_u32 v{58+tt}, v38, 4, v35")
    a("s_waitcnt vmcnt(0)")
    for r in range(2):
        for i in range(4):
            src = 4 + 4 * r + i
            a(f"v_lshlrev_b32 v{12 + 8*r + 2*i}, 16, v{src}")
            a(f"v_and_b32 v{13 + 8*r + 2*i}, 0xffff0000, v{src}")
    for r in range(2):
        b = 12 + 8 * r
        a(f"v_add_f32 v{28+r}, v{b}, v{b+1}")
        for i in range(2, 8): a(f"v_add_f32 v{28+r}, v{28+r}, v{b+i}")
    wave_sum(a, [28, 29], [53, 54])
    a("s_mov_b32 s55, 0x3b000000")
    for r in range(2):
        a(f"v_mov_b32 v{28+r}, s{53+r}")
        a(f"v_mul_f32 v{28+r}, s55, v{28+r}")
    for r in range(2):
        b = 12 + 8 * r
        for i in range(8):
            a(f"v_sub_f32 v32, v{b+i}, v{28+r}")
            if i == 0: a(f"v_mul_f32 v{30+r}, v32, v32")
            else: a(f"v_fmac_f32 v{30+r}, v32, v32")
    wave_sum(a, [30, 31], [53, 54])
    for r in range(2):
        a(f"v_mov_b32 v{30+r}, s{53+r}")
        a(f"v_mul_f32 v{30+r}, s55, v{30+r}")
        round_bf16(a, 30 + r, 30 + r)
        a(f"v_add_f32 v{30+r}, {EPS:#x}, v{30+r}")
        round_bf16(a, 30 + r, 30 + r)
        a(f"v_sqrt_f32 v{30+r}, v{30+r}")
        round_bf16(a, 30 + r, 30 + r)
        a(f"v_rcp_f32 v{40+r}, v{30+r}")
        round_bf16(a, 28 + r, 28 + r)
    for r in range(2):
        b = 12 + 8 * r
        for i in range(4):
            a(f"v_sub_f32 v{b+2*i}, v{b+2*i}, v{28+r}")
            a(f"v_sub_f32 v{b+2*i+1}, v{b+2*i+1}, v{28+r}")
            a(f"v_cvt_pk_bf16_f32 v32, v{b+2*i}, v{b+2*i+1}")
            a(f"v_lshlrev_b32 v33, 16, v32")
            a(f"v_and_b32 v34, 0xffff0000, v32")
            a(f"v_mul_f32 v33, v33, v{40+r}")
            a(f"v_mul_f32 v34, v34, v{40+r}")
            a(f"v_cvt_pk_bf16_f32 v{4+4*r+i}, v33, v34")
    a(f"s_lshl_b32 s53, {gw}, 11"); a(f"s_add_u32 s53, s53, {LT}")
    a("v_add_u32 v35, s53, v3")
    a("ds_write_b128 v35, v[4:7]")
    a("ds_write_b128 v35, v[8:11] offset:1024")
    a("v_mov_b32 v36, v28"); a("v_mov_b32 v37, v30"); a("v_mov_b32 v38, v29"); a("v_mov_b32 v39, v31")
    a(f"s_lshl_b32 s53, {gw}, 4"); a(f"s_add_u32 s53, s53, {LT + 8192}")
    a("v_mov_b32 v35, s53")
    a("s_mov_b64 exec, 1")
    a("ds_write_b128 v35, v[36:39]")
    a("s_mov_b64 exec, -1")
    for i in range(5): a(f"v_mov_b32 v{16+i}, v{56+i}")
    a("s_waitcnt lgkmcnt(0)")
    a("s_barrier")
    stp.mark()
    ACC = 32; FA = [128, 168]
    def accr(m, tt, j): return ACC + ((m*3 + tt)*4 + j)*4
    lg = Trk(a, "lgkmcnt")
    def set_slot(slot):
        sb = slot * SLOT
        for i in range(5):
            if sb == 0: a(f"v_mov_b32 v{22+i}, v{16+i}")
            else: a(f"v_add_u32 v{22+i}, {sb}, v{16+i}")
    def reads(s2, st):
        b = FA[st]; out = []
        for j in range(4):
            out.append((f"ds_read_b128 {vr(b+24+4*j,4)}, v{22+s2} offset:{2048*j}", vl(b+24+4*j,4)))
        for m in range(2):
            for tt in range(3):
                r = b + (m*3+tt)*4
                for hf in range(2):
                    out.append((f"ds_read_b64_tr_b16 {vr(r+2*hf,2)}, v{24+tt} offset:{m*12288 + s2*6144 + hf*768}", vl(r+2*hf,2)))
        return out
    def mfmas(st, first):
        b = FA[st]; out = []
        for m in range(2):
            for tt in range(3):
                for j in range(4):
                    c = "0" if first else vr(accr(m,tt,j),4)
                    out.append((f"v_mfma_f32_16x16x32_bf16 {vr(accr(m,tt,j),4)}, {vr(b+(m*3+tt)*4,4)}, {vr(b+24+4*j,4)}, {c}", vl(b+(m*3+tt)*4,4) + vl(b+24+4*j,4)))
        return out
    def interleave(mf, rd):
        ri = 0
        for n, (txt, deps) in enumerate(mf):
            lg.need(deps); a(txt)
            if ri < len(rd) and n >= 1:
                a(rd[ri][0]); lg.issue(rd[ri][1]); ri += 1
        while ri < len(rd):
            a(rd[ri][0]); lg.issue(rd[ri][1]); ri += 1
    NST = 8
    set_slot(0)
    for (t, r) in reads(0, 0): a(t); lg.issue(r)
    for s in range(NST):
        interleave(mfmas(0, s == 0), reads(1, 1))
        lg.q = []
        a("s_waitcnt lgkmcnt(0)")
        a("s_barrier")
        if s + 1 < NST:
            set_slot((s + 1) % 4)
            interleave(mfmas(1, False), reads(0, 0))
        else:
            interleave(mfmas(1, False), [])
    stp.mark()
    a("s_setprio 1")
    a(f"s_mul_i32 s53, {gw}, 11")
    a("v_lshrrev_b32 v4, 3, v1"); a("v_and_b32 v5, 7, v1"); a("v_bfe_u32 v6, v4, 1, 2"); a("v_lshlrev_b32 v6, 1, v6")
    a("v_xor_b32 v5, v5, v6"); a("v_lshlrev_b32 v4, 10, v4"); a("v_lshl_add_u32 v4, v5, 4, v4")
    S_BOFF, S_RING, S_AOFF, S_XOFF = 72, 73, 74, 75
    a(f"s_lshl_b32 s{S_BOFF}, s53, 15"); a(f"s_lshl_b32 s54, s{S_CB}, 7"); a(f"s_add_u32 s{S_BOFF}, s{S_BOFF}, s54")
    a(f"s_mul_i32 s{S_RING}, {gw}, {G2_WRING}"); a(f"s_add_u32 s{S_RING}, s{S_RING}, {P_G}")
    a(f"s_lshl_b32 s{S_AOFF}, s{S_RB}, 2"); a(f"s_mul_i32 s{S_AOFF}, s{S_AOFF}, 43"); a(f"s_add_u32 s{S_AOFF}, s{S_AOFF}, s53"); a(f"s_lshl_b32 s{S_AOFF}, s{S_AOFF}, 10")
    vm = Trk(a, "vmcnt")
    def loadB(step):
        slot = step % G2_NS
        for t in range(4):
            a(f"s_add_u32 m0, s{S_RING}, {slot*4096 + t*1024}")
            a(f"s_add_u32 s54, s{S_BOFF}, {step*32768 + t*8192}")
            a(f"buffer_load_dwordx4 v4, {sr(S_WD)}, s54 offen lds"); vm.issue([f"B{step}"])
    RC = 208; CS = 224
    a(f"v_mov_b32 v5, {P_MISC}")
    a("ds_read_b32 v6, v5")
    a("v_and_b32 v7, 15, v1"); a("v_lshlrev_b32 v7, 4, v7"); a("s_lshl_b32 s54, s70, 10"); a(f"s_add_u32 s54, s54, {P_RC}"); a("v_add_u32 v7, s54, v7")
    for j in range(4): a(f"ds_read_b128 {vr(RC+4*j,4)}, v7 offset:{256*j}")
    a("v_lshrrev_b32 v8, 4, v1"); a("v_lshlrev_b32 v8, 4, v8"); a("s_mul_i32 s54, s71, 192"); a(f"s_add_u32 s54, s54, {P_CS}"); a("v_add_u32 v8, s54, v8")
    for m in range(2):
        for tt in range(3):
            a(f"ds_read_b128 {vr(CS+(m*3+tt)*4,4)}, v8 offset:{m*384 + tt*64}")
    for s in range(G2_NS): loadB(s)
    a("s_waitcnt lgkmcnt(0)")
    a(f"v_readfirstlane_b32 s{S_NONCE}, v6")
    P = 128
    for j in range(4):
        mreg, c1, sreg = RC+4*j, RC+4*j+1, RC+4*j+2
        for tt in range(3):
            g = accr(0, tt, j); u = accr(1, tt, j); cg = CS + tt*4; cu = CS + (3+tt)*4
            bc = lambda r: f"v[{r & ~1}:{(r & ~1)+1}]"
            def sel(r): return r & 1
            for h in range(2):
                a(f"v_pk_fma_f32 v[{g+2*h}:{g+2*h+1}], v[{cg+2*h}:{cg+2*h+1}], {bc(mreg)}, v[{g+2*h}:{g+2*h+1}] op_sel:[0,{sel(mreg)},0] op_sel_hi:[1,{sel(mreg)},1] neg_lo:[0,1,0] neg_hi:[0,1,0]")
            for h in range(2):
                a(f"v_pk_fma_f32 v[{u+2*h}:{u+2*h+1}], v[{cu+2*h}:{cu+2*h+1}], {bc(mreg)}, v[{u+2*h}:{u+2*h+1}] op_sel:[0,{sel(mreg)},0] op_sel_hi:[1,{sel(mreg)},1] neg_lo:[0,1,0] neg_hi:[0,1,0]")
            for h in range(2):
                a(f"v_pk_mul_f32 v[{g+2*h}:{g+2*h+1}], v[{g+2*h}:{g+2*h+1}], {bc(c1)} op_sel:[0,{sel(c1)}] op_sel_hi:[1,{sel(c1)}]")
            for i in range(4): a(f"v_exp_f32 v{g+i}, v{g+i}")
            for h in range(2):
                a(f"v_pk_fma_f32 v[{g+2*h}:{g+2*h+1}], v[{g+2*h}:{g+2*h+1}], {bc(sreg)}, {bc(sreg)} op_sel:[0,{sel(sreg)},{sel(sreg)}] op_sel_hi:[1,{sel(sreg)},{sel(sreg)}]")
            for i in range(4): a(f"v_rcp_f32 v{g+i}, v{g+i}")
            for h in range(2):
                a(f"v_pk_mul_f32 v[{g+2*h}:{g+2*h+1}], v[{g+2*h}:{g+2*h+1}], v[{u+2*h}:{u+2*h+1}]")
            for h in range(2):
                a(f"v_cvt_pk_bf16_f32 v{P+j*6+tt*2+h}, v{g+2*h}, v{g+2*h+1}")
    stp.mark()
    a(f"s_lshl_b32 s53, s{S_MT}, 3"); a("s_lshl_b32 s54, s70, 2"); a("s_add_u32 s53, s53, s54")
    a("s_mul_i32 s53, s53, 43"); a(f"s_add_u32 s53, s53, s{S_U0}"); a("s_lshl_b32 s53, s53, 10")
    a("v_lshlrev_b32 v3, 4, v1")
    a("s_cmp_eq_u32 s71, 0")
    a("s_cbranch_scc0 G1_FH1")
    for j in range(4):
        b = P + j*6
        a(f"s_add_u32 s54, s53, {j*43*1024}")
        a(f"buffer_store_dwordx4 {vr(b,4)}, v3, {sr(S_HF)}, s54 offen sc1")
        a(f"buffer_store_dwordx2 {vr(b+4,2)}, v3, {sr(S_HF)}, s54 offen offset:1024 sc1")
    a("s_branch G1_DONE")
    a.label("G1_FH1")
    for j in range(4):
        b = P + j*6
        a(f"s_add_u32 s54, s53, {j*43*1024}")
        a(f"buffer_store_dwordx2 {vr(b,2)}, v3, {sr(S_HF)}, s54 offen offset:1032 sc1")
        a(f"buffer_store_dwordx4 {vr(b+2,4)}, v3, {sr(S_HF)}, s54 offen offset:2048 sc1")
    a.label("G1_DONE")
    a("s_waitcnt vmcnt(0)")
    vm.q = []
    a(f"s_lshl_b32 s53, s{S_MT}, 1"); a("s_add_u32 s53, s53, s70"); a("s_lshl_b32 s53, s53, 5"); a(f"s_lshl_b32 s54, s{S_NG}, 1"); a("s_add_u32 s53, s53, s54"); a("s_add_u32 s53, s53, s71")
    a("s_lshl_b32 s53, s53, 2"); a(f"s_add_u32 s53, s53, {FL_FH}")
    a(f"v_mov_b32 v5, s{S_NONCE}"); a("v_mov_b32 v6, 0")
    a("s_mov_b64 exec, 1")
    a(f"buffer_store_dword v5, v6, {sr(S_FL)}, s53 offen sc1")
    a("s_mov_b64 exec, -1")
    stp.mark()
    a("v_and_b32 v5, 15, v1"); a("v_lshrrev_b32 v6, 4, v1")
    a("v_lshrrev_b32 v7, 2, v5"); a("v_lshl_add_u32 v7, v6, 2, v7")
    a("v_bfe_u32 v8, v7, 1, 2"); a("v_lshlrev_b32 v8, 5, v8"); a("v_lshl_add_u32 v8, v7, 7, v8")
    a("v_bfe_u32 v9, v5, 1, 1"); a("v_lshl_add_u32 v8, v9, 4, v8")
    a("v_and_b32 v9, 1, v5"); a("v_lshl_add_u32 v8, v9, 3, v8")
    a(f"v_add_u32 v8, s{S_RING}, v8")
    for nt in range(4): a(f"v_xor_b32 v{10+nt}, {nt<<5}, v8")
    a("v_and_b32 v14, 31, v1"); a("v_lshlrev_b32 v14, 2, v14")
    a(f"s_lshl_b32 s55, s{S_RB}, 7"); a(f"s_add_u32 s55, s55, {FL_FH}")
    poll(a, 14, 224, "s55", errcode=2)
    stp.mark()
    NSTEP = 11; AR = 80; ACC2 = 16; BF = [192, 208]
    def loadA(step):
        slot = step % G2_NS
        for j in range(4):
            a(f"s_add_u32 s54, s{S_AOFF}, {j*43*1024 + step*1024}")
            if step == 10:
                a(f"s_cmp_eq_u32 {gw}, 3"); a(f"s_cselect_b32 s54, {HF_BYTES}, s54")
            a(f"buffer_load_dwordx4 {vr(AR + slot*16 + 4*j, 4)}, v3, {sr(S_HF)}, s54 offen sc1"); vm.issue([f"A{step}"])
    for s in range(G2_NS): loadA(s)
    a(f"s_lshl_b32 s53, s{S_RB}, 16"); a(f"s_lshl_b32 s54, {gw}, 14"); a("s_add_u32 s53, s53, s54"); a(f"s_lshl_b32 s54, s{S_CB}, 7"); a(f"s_add_u32 s{S_XOFF}, s53, s54")
    a("v_lshrrev_b32 v15, 2, v1"); a("v_lshlrev_b32 v15, 10, v15"); a("v_and_b32 v9, 3, v1"); a("v_lshl_add_u32 v15, v9, 5, v15")
    a(f"buffer_load_dwordx4 v[224:227], v15, {sr(S_X)}, s{S_XOFF} offen"); vm.issue(["X"])
    a(f"buffer_load_dwordx4 v[228:231], v15, {sr(S_X)}, s{S_XOFF} offen offset:16"); vm.issue(["X"])
    lg = Trk(a, "lgkmcnt")
    def breads(step, st):
        slot = step % G2_NS; out = []
        for nt in range(4):
            for hf in range(2):
                r = BF[st] + 4*nt + 2*hf
                out.append((f"ds_read_b64_tr_b16 {vr(r,2)}, v{10+nt} offset:{slot*4096 + hf*2048}", vl(r,2)))
        return out
    for (t, r) in breads(0, 0): a(t); lg.issue(r)
    for step in range(NSTEP):
        st = step & 1; slot = step % G2_NS
        vm.need([f"A{step}"])
        rd = []
        n = 0; ri = 0
        for j in range(4):
            for nt in range(4):
                if n == 8 and step + 1 < NSTEP:
                    vm.need([f"B{step+1}"])
                    rd = breads(step + 1, st ^ 1)
                ar = AR + slot*16 + 4*j; br = BF[st] + 4*nt
                lg.need(vl(br, 4))
                c = "0" if step == 0 else vr(ACC2 + (j*4+nt)*4, 4)
                a(f"v_mfma_f32_16x16x32_bf16 {vr(ACC2 + (j*4+nt)*4, 4)}, {vr(ar,4)}, {vr(br,4)}, {c}")
                n += 1
                if ri < len(rd):
                    a(rd[ri][0]); lg.issue(rd[ri][1]); ri += 1
        while ri < len(rd):
            a(rd[ri][0]); lg.issue(rd[ri][1]); ri += 1
        if step + G2_NS < NSTEP:
            loadA(step + G2_NS); loadB(step + G2_NS)
    stp.mark()
    a(f"s_lshr_b32 s53, s{S_RB}, 4"); a("s_lshl_b32 s53, s53, 11"); a(f"s_lshl_b32 s54, s{S_CB}, 8"); a("s_add_u32 s55, s53, s54"); a(f"s_add_u32 s55, s55, {FL_FA}")
    a("v_lshlrev_b32 v14, 2, v1")
    poll(a, 14, 232, "s55", errcode=3)
    a(f"s_lshl_b32 s53, s{S_RB}, 3"); a(f"s_lshl_b32 s54, {gw}, 1"); a("s_add_u32 s53, s53, s54")
    a("s_lshl_b32 s53, s53, 13"); a(f"s_lshl_b32 s54, s{S_CB}, 10"); a("s_add_u32 s53, s53, s54")
    a("v_lshrrev_b32 v7, 1, v6"); a("v_lshlrev_b32 v7, 13, v7")
    a("v_lshl_add_u32 v7, v5, 4, v7"); a("v_and_b32 v8, 1, v6"); a("v_lshl_add_u32 v7, v8, 3, v7")
    for nt in range(4):
        a(f"buffer_load_dwordx2 {vr(80+2*nt,2)}, v7, {sr(S_AT)}, s53 offen offset:{nt*256} sc1")
    a("s_waitcnt lgkmcnt(0)")
    a("s_barrier")
    a(f"s_lshl_b32 s54, {gw}, 12"); a(f"s_add_u32 s54, s54, {P_G}")
    a("v_add_u32 v9, s54, v3")
    for j in range(4):
        for nt in range(4):
            a(f"ds_write_b128 v9, {vr(ACC2 + (j*4+nt)*4, 4)} offset:{j*16384 + nt*1024}")
    a("s_waitcnt lgkmcnt(0)")
    a("s_barrier")
    a(f"s_lshl_b32 s54, {gw}, 14"); a(f"s_add_u32 s54, s54, {P_G}")
    a("v_add_u32 v9, s54, v3")
    for src in range(4):
        for nt in range(4):
            a(f"ds_read_b128 {vr(96 + (src*4+nt)*4, 4)}, v9 offset:{src*4096 + nt*1024}")
    a("s_waitcnt lgkmcnt(0)")
    for nt in range(4):
        for i in range(4):
            r = 96 + nt*4 + i
            a(f"v_add_f32 v{r}, v{r}, v{r+16}"); a(f"v_add_f32 v{r+32}, v{r+32}, v{r+48}"); a(f"v_add_f32 v{r}, v{r}, v{r+32}")
    a("s_waitcnt vmcnt(0)")
    a("s_mov_b32 s53, 0x05040100"); a("s_mov_b32 s54, 0x07060302")
    a(f"s_mul_i32 s55, {gw}, 4352"); a(f"s_add_u32 s55, s55, {P_G + 65536}")
    a("v_mul_u32_u24 v9, 1088, v6"); a("v_lshl_add_u32 v9, v5, 2, v9"); a("v_add_u32 v9, s55, v9")
    for nt in range(4):
        r = 96 + nt*4
        a(f"v_cvt_pk_bf16_f32 v{r}, v{r}, v{r+1}"); a(f"v_cvt_pk_bf16_f32 v{r+2}, v{r+2}, v{r+3}")
        at0 = 80 + 2*nt
        a(f"v_perm_b32 v112, v{r}, v{at0}, s53"); a(f"v_perm_b32 v113, v{r}, v{at0}, s54")
        a(f"v_perm_b32 v114, v{r+2}, v{at0+1}, s53"); a(f"v_perm_b32 v115, v{r+2}, v{at0+1}, s54")
        for i in range(4):
            a(f"ds_write_b32 v9, v{112+i} offset:{i*272 + nt*64}")
    a("v_lshrrev_b32 v9, 2, v1"); a("v_mul_u32_u24 v9, 272, v9"); a("v_and_b32 v10, 3, v1"); a("v_lshl_add_u32 v9, v10, 6, v9"); a("v_add_u32 v9, s55, v9")
    a("s_waitcnt lgkmcnt(0)")
    for q in range(4): a(f"ds_read_b128 {vr(96+4*q,4)}, v9 offset:{16*q}")
    a("s_waitcnt lgkmcnt(0)")
    for q in range(8):
        e0 = 96 + 2*q; e1 = e0 + 1; xr = 224 + q
        a(f"v_lshlrev_b32 v112, 16, v{xr}"); a(f"v_and_b32 v113, 0xffff0000, v{xr}")
        a(f"v_lshlrev_b32 v114, 16, v{e0}"); a(f"v_lshlrev_b32 v115, 16, v{e1}")
        a(f"v_add_f32 v112, v112, v114"); a(f"v_add_f32 v113, v113, v115")
        a(f"v_cvt_pk_bf16_f32 v112, v112, v113")
        a(f"v_lshlrev_b32 v113, 16, v112"); a(f"v_and_b32 v112, 0xffff0000, v112")
        a(f"v_and_b32 v114, 0xffff0000, v{e0}"); a(f"v_and_b32 v115, 0xffff0000, v{e1}")
        a(f"v_add_f32 v113, v113, v114"); a(f"v_add_f32 v112, v112, v115")
        a(f"v_cvt_pk_bf16_f32 v{116+q}, v113, v112")
    a(f"buffer_store_dwordx4 v[116:119], v15, {sr(S_OUT)}, s{S_XOFF} offen")
    a(f"buffer_store_dwordx4 v[120:123], v15, {sr(S_OUT)}, s{S_XOFF} offen offset:16")
    if fc.STAMP:
        a("s_waitcnt vmcnt(0)")
        stp.mark()
        stp.flush()
    a("s_endpgm")

def s_path(a, stp):
    sw = f"s{S_RW}"
    a.label("S_PATH")
    a("v_lshrrev_b32 v3, 3, v1"); a("v_and_b32 v4, 7, v1"); a("v_lshrrev_b32 v5, 1, v3")
    a("v_xor_b32 v6, v4, v5"); a("v_xor_b32 v7, 4, v6"); a("v_lshlrev_b32 v3, 10, v3")
    a("v_lshl_add_u32 v10, v6, 4, v3"); a("v_lshl_add_u32 v11, v7, 4, v3")
    for t in range(3):
        a(f"v_add_u32 v3, {64*t}, v1")
        a("v_mul_u32_u24 v4, 5462, v3"); a("v_lshrrev_b32 v4, 16, v4")
        a("v_mul_u32_u24 v5, 12, v4"); a("v_sub_u32 v5, v3, v5")
        a("v_bfe_u32 v6, v4, 3, 1"); a("v_lshlrev_b32 v6, 1, v6"); a("v_xor_b32 v5, v5, v6")
        a("v_mul_u32_u24 v4, 2752, v4")
        a(f"v_lshl_add_u32 v{12+t}, v5, 4, v4")
    a(f"s_lshl_b32 s76, s{S_MT}, 17"); a(f"s_lshl_b32 s53, {sw}, 15"); a("s_add_u32 s76, s76, s53")
    a(f"s_mul_i32 s77, {sw}, 44032"); a(f"s_lshl_b32 s53, s{S_U0}, 6"); a("s_add_u32 s77, s77, s53")
    a(f"s_lshl_b32 s78, {sw}, 12")
    a(f"s_mul_i32 s79, {sw}, 3072"); a("s_add_u32 s79, s79, 16384")
    vm = Trk(a, "vmcnt")
    def dma_stage(stage):
        sb = (stage % 4) * SLOT
        for m in range(2):
            for t in range(3):
                a(f"s_add_u32 m0, s79, {sb + m*12288 + t*1024}")
                if t == 0 and m == 0: a(f"s_add_u32 s53, s77, {stage*64*2752}")
                a(f"buffer_load_dwordx4 v{12+t}, {sr(S_WG + 4*m)}, s53 offen lds"); vm.issue([f"st{stage}"])
        for t in range(4):
            a(f"s_add_u32 m0, s78, {sb + t*1024}")
            a(f"s_add_u32 s53, s76, {t*8192 + stage*128}")
            a(f"buffer_load_dwordx4 v{10 + (t&1)}, {sr(S_X)}, s53 offen lds"); vm.issue([f"st{stage}"])
    for s in range(3): dma_stage(s)
    a(f"s_cmp_lg_u32 {sw}, 0"); a("s_cbranch_scc1 S_NN")
    a("s_memrealtime s[54:55]"); a("s_waitcnt lgkmcnt(0)"); a("s_or_b32 s54, s54, 1")
    a("v_mov_b32 v24, s54"); a("v_mov_b32 v25, 0"); a("v_mov_b32 v26, 0")
    a("s_mov_b64 exec, 1")
    a(f"global_atomic_cmpswap v27, v26, v[24:25], s[{KP['dbg']}:{KP['dbg']+1}] sc0")
    a("s_mov_b64 exec, -1")
    a.label("S_NN")
    a("v_and_b32 v3, 15, v1"); a("v_lshrrev_b32 v4, 4, v1")
    a("v_and_b32 v5, 1, v4"); a("v_lshlrev_b32 v6, 3, v5"); a("v_lshrrev_b32 v7, 1, v4"); a("v_lshl_add_u32 v6, v7, 2, v6")
    a("v_lshrrev_b32 v7, 2, v3"); a("v_add_u32 v6, v6, v7"); a("v_mul_u32_u24 v6, 192, v6")
    a("v_and_b32 v7, 1, v3"); a("v_lshl_add_u32 v6, v7, 3, v6")
    a(f"s_lshr_b32 s53, {sw}, 1"); a("s_mul_i32 s53, s53, 12288"); a("s_add_u32 s53, s53, 16384"); a("v_add_u32 v6, s53, v6")
    a("v_bfe_u32 v7, v3, 1, 1"); a("v_lshlrev_b32 v5, 1, v5")
    a(f"s_and_b32 s53, {sw}, 1"); a("s_mul_i32 s53, s53, 6")
    for i in range(3):
        a("v_add_u32 v8, s53, v7"); a(f"v_add_u32 v8, {2*i}, v8"); a("v_xor_b32 v8, v8, v5")
        a(f"v_lshl_add_u32 v{16+i}, v8, 4, v6")
        a(f"v_mov_b32 v{20+i}, 0")
    a("s_mov_b32 s75, 0x3f803f80")
    vm.need(["st0"])
    a("s_barrier")
    stp.mark()
    lg = Trk(a, "lgkmcnt")
    def cs_stage(s):
        sb = (s % 4) * SLOT
        for i in range(3): a(f"v_add_u32 v{28+i}, {sb}, v{16+i}") if sb else a(f"v_mov_b32 v{28+i}, v{16+i}")
        for i in range(3):
            for q in range(4):
                r = 32 + (i*4+q)*2
                a(f"ds_read_b64_tr_b16 {vr(r,2)}, v{28+i} offset:{q*3072}"); lg.issue(vl(r,2))
        for i in range(3):
            for q in range(4):
                r = 32 + (i*4+q)*2
                lg.need(vl(r,2))
                a(f"v_dot2c_f32_bf16 v{20+i}, s75, v{r}"); a(f"v_dot2c_f32_bf16 v{20+i}, s75, v{r+1}")
    for s in range(8):
        if s == 0:
            a(f"s_lshl_b32 s53, {sw}, 8"); a(f"s_add_u32 s53, s53, {LT}")
            a("v_lshlrev_b32 v56, 2, v1"); a("v_add_u32 v56, s53, v56")
            for r in range(8):
                a(f"ds_read_b32 v{60+r}, v56 offset:{1024*r}"); lg.issue([f"v{60+r}"])
            a(f"v_mov_b32 v57, {LT + 8192}"); a("v_and_b32 v58, 7, v1"); a("v_lshl_add_u32 v57, v58, 3, v57")
            a("ds_read_b64 v[76:77], v57"); lg.issue(["v76", "v77"])
            a("s_mov_b32 s54, 0x05040100"); a("s_mov_b32 s55, 0x07060302")
            lg.need(vl(60, 8) + ["v76"])
            for i in range(4):
                a(f"v_perm_b32 v{68+i}, v{61+2*i}, v{60+2*i}, s54")
                a(f"v_perm_b32 v{72+i}, v{61+2*i}, v{60+2*i}, s55")
            a(f"s_lshl_b32 s53, s{S_MT}, 4"); a(f"s_add_u32 s53, s53, s{S_NG}"); a("s_lshl_b32 s53, s53, 13"); a(f"s_lshl_b32 s54, {sw}, 11"); a("s_add_u32 s53, s53, s54")
            a("v_lshlrev_b32 v56, 5, v1")
            a(f"buffer_store_dwordx4 v[68:71], v56, {sr(S_XT)}, s53 offen sc1"); vm.issue(["xt"])
            a(f"buffer_store_dwordx4 v[72:75], v56, {sr(S_XT)}, s53 offen offset:16 sc1"); vm.issue(["xt"])
            a(f"s_lshl_b32 s53, s{S_MT}, 4"); a(f"s_add_u32 s53, s53, s{S_NG}"); a("s_lshl_b32 s53, s53, 6"); a(f"s_add_u32 s53, s53, {FL_ST}")
            a("v_lshlrev_b32 v58, 3, v58")
            a(f"buffer_store_dwordx2 v[76:77], v58, {sr(S_FL)}, s53 offen sc1"); vm.issue(["xt"])
        cs_stage(s)
        if s == 3:
            a(f"s_cmp_lg_u32 {sw}, 0"); a("s_cbranch_scc1 S_NFX")
            a("v_cmp_eq_u32 vcc, 0, v27"); a("v_cndmask_b32 v27, v27, v24, vcc")
            a("s_nop 0")
            a(f"v_readfirstlane_b32 s{S_NONCE}, v27")
            a(f"s_lshl_b32 s53, s{S_MT}, 4"); a(f"s_add_u32 s53, s53, s{S_NG}"); a("s_lshl_b32 s53, s53, 2"); a(f"s_add_u32 s53, s53, {FL_FX}")
            a(f"v_mov_b32 v24, s{S_NONCE}"); a("v_mov_b32 v25, 0")
            a("s_mov_b64 exec, 1")
            a(f"buffer_store_dword v24, v25, {sr(S_FL)}, s53 offen sc1")
            a("s_mov_b64 exec, -1")
            a.label("S_NFX")
        if s == 6:
            a(f"s_cmp_lg_u32 {sw}, 0"); a("s_cbranch_scc1 S_NRC")
            a("v_and_b32 v56, 15, v1"); a("v_lshlrev_b32 v56, 2, v56")
            a(f"s_lshl_b32 s55, s{S_MT}, 6"); a(f"s_add_u32 s55, s55, {FL_FX}")
            poll(a, 56, 60, "s55", errcode=4)
            a(f"s_lshl_b32 s53, s{S_MT}, 10"); a(f"s_add_u32 s53, s53, {FL_ST}")
            a("v_lshlrev_b32 v56, 4, v1")
            a(f"buffer_load_dwordx4 v[60:63], v56, {sr(S_FL)}, s53 offen sc1")
            a("s_waitcnt vmcnt(0)")
            a("v_rcp_f32 v65, v61"); a("v_rcp_f32 v69, v63")
            a("v_mov_b32 v64, v60"); a("v_mov_b32 v66, v61"); a("v_mov_b32 v67, 0")
            a("v_mov_b32 v68, v62"); a("v_mov_b32 v70, v63"); a("v_mov_b32 v71, 0")
            a(f"v_mul_f32 v65, {NLOG2E:#x}, v65"); a(f"v_mul_f32 v69, {NLOG2E:#x}, v69")
            a("v_lshlrev_b32 v56, 5, v1")
            a(f"ds_write_b128 v56, v[64:67] offset:{P_RC}"); a(f"ds_write_b128 v56, v[68:71] offset:{P_RC + 16}")
            a(f"v_mov_b32 v60, s{S_NONCE}"); a("v_mov_b32 v61, 0"); a("v_mov_b32 v62, 0"); a("v_mov_b32 v63, 0")
            a(f"v_mov_b32 v56, {P_MISC}")
            a("ds_write_b128 v56, v[60:63]")
            a.label("S_NRC")
        if s == 7:
            for i in range(3):
                a(f"v_mov_b32 v24, v{20+i}")
                a(f"v_permlane32_swap_b32 v{20+i}, v24")
                a(f"v_add_f32 v{20+i}, v{20+i}, v24")
                a(f"v_mov_b32 v24, v{20+i}")
                a(f"v_permlane16_swap_b32 v{20+i}, v24")
                a(f"v_add_f32 v{20+i}, v{20+i}, v24")
            a(f"s_mul_i32 s53, {sw}, 192"); a(f"s_add_u32 s53, s53, {P_CS}")
            a("v_and_b32 v24, 15, v1"); a("v_lshlrev_b32 v24, 2, v24"); a("v_add_u32 v24, s53, v24")
            for i in range(3): a(f"ds_write_b32 v24, v{20+i} offset:{64*i}")
        if s + 1 < 8: vm.need([f"st{s+1}"])
        lg.q = []
        a("s_waitcnt lgkmcnt(0)")
        a("s_barrier")
        if s + 3 < 8: dma_stage(s + 3)
    stp.mark()
    a(f"v_mov_b32 v250, {P_MISC + 4}"); a("v_mov_b32 v253, 1")
    a(f"v_mov_b32 v5, {P_MISC}"); a("ds_read_b32 v6, v5")
    a(f"s_lshr_b32 s70, {sw}, 1"); a(f"s_and_b32 s71, {sw}, 1")
    CH, HF = "s70", "s71"
    srd(a, S_WG, KP['lar'], D * NM * 2); srd(a, S_WU, KP['aim'], D * NM * 2); srd(a, S_WD, KP['cr'], D * NM * 2); srd(a, S_X, KP['ci'], D * NM * 2)
    a(f"s_lshl_b32 s53, s{S_CP}, 9"); a(f"s_lshl_b32 s54, {sw}, 7"); a("s_add_u32 s53, s53, s54")
    a("v_lshlrev_b32 v3, 1, v1")
    a(f"buffer_load_ushort v4, v3, {sr(S_WG)}, s53 offen"); a(f"buffer_load_ushort v5, v3, {sr(S_WU)}, s53 offen")
    a(f"buffer_load_ushort v7, v3, {sr(S_X)}, s53 offen")
    a(f"s_lshl_b32 s54, s{S_CP}, 2")
    a(f"s_add_u32 s76, s{KP['ldt']}, s54"); a(f"s_addc_u32 s77, s{KP['ldt']+1}, 0")
    a(f"s_add_u32 s78, s{KP['dsk']}, s54"); a(f"s_addc_u32 s79, s{KP['dsk']+1}, 0")
    a("s_waitcnt lgkmcnt(0)")
    a(f"v_readfirstlane_b32 s{S_NONCE}, v6")
    a(f"buffer_load_ushort v6, v3, {sr(S_WD)}, s53 offen")
    a("s_load_dword s72, s[76:77], 0"); a("s_load_dword s73, s[78:79], 0")
    a("v_mov_b32 v12, 0"); a("v_mov_b32 v13, 0"); a("v_mov_b32 v14, 0"); a("v_mov_b32 v15, 0")
    a(f"s_cmp_lg_u32 {sw}, 0"); a("s_cbranch_scc1 SSM_NZ0")
    a("v_lshrrev_b32 v9, 5, v1"); a(f"v_mul_u32_u24 v9, {P_USTR}, v9"); a("v_and_b32 v10, 31, v1"); a("v_lshl_add_u32 v9, v10, 4, v9")
    a(f"ds_write_b128 v9, v[12:15] offset:{P_U0}")
    a.label("SSM_NZ0")
    a("s_waitcnt lgkmcnt(0)")
    a("s_lshl_b32 s53, s72, 16"); a("s_and_b32 s54, s72, 0xffff0000")
    a("s_lshl_b32 s76, s73, 16"); a("s_and_b32 s77, s73, 0xffff0000")
    a(f"s_cmp_eq_u32 {CH}, 0"); a("s_cselect_b32 s72, s53, s54"); a("s_cselect_b32 s73, s76, s77")
    a(f"s_mov_b32 s74, {LOG2E}")
    a("v_mov_b32 v9, s72"); a("v_mul_f32 v9, s74, v9"); a("v_exp_f32 v9, v9")
    round_bf16(a, 9, 9)
    a("s_waitcnt vmcnt(0)")
    a("v_lshlrev_b32 v4, 16, v4"); a("v_lshlrev_b32 v5, 16, v5"); a("v_lshlrev_b32 v6, 16, v6"); a("v_lshlrev_b32 v7, 16, v7")
    a("v_lshlrev_b32 v8, 4, v1")
    poll(a, 8, 196, f"{FL_FX}", nwords4=True, errcode=5)
    a(f"s_lshl_b32 s53, s{S_CP}, 1"); a(f"s_add_u32 s53, s53, {CH}"); a("s_lshl_b32 s53, s53, 4"); a(f"s_lshl_b32 s54, {HF}, 20"); a("s_add_u32 s53, s53, s54")
    a("v_lshlrev_b32 v8, 13, v1")
    a(f"buffer_load_dwordx4 v[200:203], v8, {sr(S_XT)}, s53 offen sc1")
    a(f"s_add_u32 s53, s53, {64*8192}")
    a(f"buffer_load_dwordx4 v[204:207], v8, {sr(S_XT)}, s53 offen sc1")
    stp.mark()
    a("v_mul_f32 v4, s74, v4"); a("v_exp_f32 v4, v4")
    round_bf16(a, 4, 4)
    a("v_mul_f32 v4, v4, v9"); a("v_mul_f32 v4, s74, v4")
    a("v_mul_f32 v5, v5, v9"); a(f"v_mul_f32 v5, {INV2PI:#x}, v5")
    a("v_add_f32 v9, v9, v9")
    a("v_mul_f32 v16, v6, v9"); a("v_mul_f32 v17, v7, v9")
    for (dst, mult) in ((18, 1.0), (20, 8.0), (22, 128.0)):
        a(f"v_mul_f32 v10, {fbits(mult):#x}, v4"); a(f"v_mul_f32 v11, {fbits(mult):#x}, v5")
        a("v_exp_f32 v10, -v10"); a("v_fract_f32 v11, v11")
        a(f"v_cos_f32 v{dst}, v11"); a(f"v_sin_f32 v{dst+1}, v11")
        a(f"v_mul_f32 v{dst}, v{dst}, v10"); a(f"v_mul_f32 v{dst+1}, v{dst+1}, v10")
    for s_ in cmul(24, 18, 18): a(s_)
    for s_ in cmul(26, 24, 24): a(s_)
    a(f"s_mul_i32 s76, {sw}, {P_GW}"); a(f"s_add_u32 s76, s76, {P_GEN}")
    a("v_lshlrev_b32 v28, 2, v1"); a("v_add_u32 v28, s76, v28")
    a("v_and_b32 v29, 15, v1"); a(f"v_mul_u32_u24 v29, {P_PITCH}, v29"); a("v_lshrrev_b32 v30, 4, v1"); a("v_lshl_add_u32 v29, v30, 4, v29"); a("v_add_u32 v29, s76, v29")
    def emit_row(pair, row, neg_im=False, tmp=None):
        n = "-" if neg_im else ""
        return [f"v_cvt_pk_bf16_f32 v{tmp}, v{pair}, {n}v{pair+1}", f"ds_write_b32 v28, v{tmp} offset:{row * P_PITCH}"]
    def rr(*streams):
        idx = [0] * len(streams)
        while any(idx[i] < len(s) for i, s in enumerate(streams)):
            for i, s in enumerate(streams):
                if idx[i] < len(s): a(s[idx[i]]); idx[i] += 1
    def Mreg(h): return 22 if h == 1 else (40 + 2 * h if h <= 7 else 30 + 2 * (h & 1))
    BFR = 72; AFR = 88; KACC = 136
    def kmfma(tt, with_b):
        a("s_waitcnt lgkmcnt(0)")
        if with_b:
            for ks in range(4): a(f"ds_read_b128 {vr(BFR+4*ks,4)}, v29 offset:{16*P_PITCH + 64*ks}")
        for ks in range(4): a(f"ds_read_b128 {vr(AFR+4*ks,4)}, v29 offset:{64*ks}")
        a("s_waitcnt lgkmcnt(0)")
        for ks in range(4):
            c = "0" if ks == 0 else vr(KACC+4*tt,4)
            a(f"v_mfma_f32_16x16x32_bf16 {vr(KACC+4*tt,4)}, {vr(AFR+4*ks,4)}, {vr(BFR+4*ks,4)}, {c}")
    sB = emit_row(16, 16, True, tmp=35); prev = 16
    for l in range(1, 16):
        d = 60 + 2 * (l & 1); sB += cmul(d, prev, 20) + emit_row(d, 16 + l, True, tmp=35); prev = d
    sC = ["v_mov_b32 v36, 0x3f80", "ds_write_b32 v28, v36 offset:0"] + emit_row(18, 1, tmp=36) + emit_row(24, 2, tmp=36); prev = 24
    for r in range(3, 8):
        d = 64 + 2 * (r & 1); sC += cmul(d, prev, 18) + emit_row(d, r, tmp=36); prev = d
    sE = emit_row(22, 8, tmp=34); prev = 22
    for r in range(1, 8):
        d = 68 + 2 * (r & 1); sE += cmul(d, prev, 18) + emit_row(d, 8 + r, tmp=34); prev = d
    sM = []
    for h in range(2, 8): sM += cmul(Mreg(h), Mreg(h - 1), 22)
    rr(sB, sC, sE, sM)
    kmfma(0, True)
    s1 = emit_row(Mreg(2), 0, tmp=34); prev = Mreg(2)
    for r in range(1, 4):
        d = 60 + 2 * (r & 1); s1 += cmul(d, prev, 24) + emit_row(d, r, tmp=34); prev = d
    s2 = emit_row(Mreg(3), 4, tmp=35); prev = Mreg(3)
    for r in range(1, 4):
        d = 64 + 2 * (r & 1); s2 += cmul(d, prev, 24) + emit_row(d, 4 + r, tmp=35); prev = d
    s3 = []
    for h in range(4, 8):
        d = 68 + 2 * (h & 1); s3 += emit_row(Mreg(h), 8 + 2*(h-4), tmp=36) + cmul(d, Mreg(h), 26) + emit_row(d, 9 + 2*(h-4), tmp=36)
    s4 = []; prevM = Mreg(7)
    for h in range(8, 17):
        d = 104 + 2 * (h - 8); s4 += cmul(d, prevM, 22); prevM = d
    rr(s1, s2, s3, s4)
    kmfma(1, False)
    s5 = []
    for h in range(8, 17): s5 += emit_row(104 + 2 * (h - 8), h - 8, tmp=34 + (h & 1))
    rr(s5)
    kmfma(2, False)
    stp.mark()
    a("v_lshlrev_b32 v30, 2, v1"); a("v_add_u32 v31, s76, v30")
    a(f"s_xor_b32 s53, {sw}, 1"); a(f"s_mul_i32 s53, s53, {P_GW}"); a(f"s_add_u32 s53, s53, {P_GEN}"); a("v_add_u32 v32, s53, v30")
    a("v_and_b32 v40, 15, v1"); a("v_lshlrev_b32 v40, 3, v40"); a("v_lshrrev_b32 v41, 4, v1")
    a("v_lshrrev_b32 v42, 1, v41"); a("v_lshlrev_b32 v42, 7, v42"); a("v_and_b32 v43, 1, v41"); a("v_lshl_add_u32 v42, v43, 2, v42"); a("v_add_u32 v42, v42, v40")
    a("v_cmp_gt_u32 vcc, 2, v41")
    a("v_lshlrev_b32 v43, 7, v41"); a("v_add_u32 v43, 256, v43"); a("v_lshlrev_b32 v44, 8, v41")
    a("v_cndmask_b32 v43, v44, v43, vcc"); a("v_add_u32 v43, v43, v40")
    for i, (x, y) in enumerate(((2, 4), (4, 128), (6, 132))):
        a(f"v_mov_b32 v{48+i}, {y}"); a(f"v_mov_b32 v{52+i}, {x}"); a(f"v_cndmask_b32 v{48+i}, v{48+i}, v{52+i}, vcc")
    a("v_lshlrev_b32 v44, 9, v41"); a("v_add_u32 v44, 1024, v44"); a("v_add_u32 v44, v44, v40")
    a(f"s_lshl_b32 s77, {CH}, 1"); a(f"s_add_u32 s77, s77, {P_TABOFF & 0xffffffff:#x}")
    def finalize(send, keep, plist, lab, k):
        for kk, r in enumerate(send): a(f"ds_write_b32 v31, v{KACC+r} offset:{256*kk}")
        for kk, code in enumerate(plist):
            for c in code: a(c.replace("PD", f"v{64+kk}"))
        for kk in range(6):
            a(f"v_cvt_f32_u32 v{64+kk}, v{64+kk}")
            a(f"v_lshrrev_b32 v{64+kk}, 14, v{64+kk}")
            a(f"v_max_u32 v{64+kk}, {4*0x3F7F}, v{64+kk}")
        return
    a(f"s_cmp_eq_u32 {HF}, 0"); a("s_cbranch_scc0 SSM_HF1a")
    p_hf0 = [[f"v_add_u32 PD, {i}, v42"] for i in range(4)] + [["v_mov_b32 PD, v43"], ["v_add_u32 PD, v43, v48"]]
    finalize(range(6, 12), range(0, 6), p_hf0, "a", 1)
    for kk in range(6):
        a(f"v_add_u32 v{64+kk}, s77, v{64+kk}"); a(f"v_mov_b32 v{56+kk}, v{KACC+kk}")
    a("s_branch SSM_HFXa")
    a.label("SSM_HF1a")
    p_hf1 = [["v_add_u32 PD, v43, v49"], ["v_add_u32 PD, v43, v50"]] + [[f"v_add_u32 PD, {128*i}, v44"] for i in range(4)]
    finalize(range(0, 6), range(6, 12), p_hf1, "b", 1)
    a(f"v_mov_b32 v70, {P_MISC + 32}")
    a(f"s_mov_b32 s53, {0x45000000 >> 14}")
    for kk in range(6):
        if kk >= 2: a(f"v_cmp_ge_u32 vcc, s53, v{64+kk}")
        a(f"v_add_u32 v{64+kk}, s77, v{64+kk}")
        if kk >= 2: a(f"v_cndmask_b32 v{64+kk}, v70, v{64+kk}, vcc")
        a(f"v_mov_b32 v{56+kk}, v{KACC+6+kk}")
    a.label("SSM_HFXa")
    sbar(a, 250, 252, 1)
    for kk in range(6): a(f"ds_read_b32 v{72+kk}, v32 offset:{256*kk}")
    a("s_waitcnt lgkmcnt(0)")
    for kk in range(6):
        a(f"v_add_f32 v{56+kk}, v{56+kk}, v{72+kk}")
        a(f"v_cvt_pk_bf16_f32 v{56+kk}, v{56+kk}, v{56+kk}")
    assert P_GEN + 3 * P_GW + 1536 <= P_TAB
    for kk in range(6): a(f"ds_write_b16 v{64+kk}, v{56+kk}")
    sbar(a, 250, 252, 2)
    stp.mark()
    a(f"s_mul_i32 s53, {CH}, {P_USTR}"); a(f"s_lshl_b32 s54, {HF}, 11"); a("s_add_u32 s53, s53, s54"); a(f"s_add_u32 s53, s53, {P_U0 + 512}")
    a("v_lshlrev_b32 v39, 4, v1"); a("v_add_u32 v39, s53, v39")
    a("s_waitcnt vmcnt(0)")
    a("ds_write_b128 v39, v[200:203]"); a("ds_write_b128 v39, v[204:207] offset:1024")
    a(f"s_lshl_b32 s53, {sw}, 6"); a("v_add_u32 v38, s53, v1")
    a("v_lshlrev_b32 v40, 3, v38"); a("v_sub_u32 v40, 2047, v40"); a("v_cvt_f32_i32 v40, v40")
    for e in range(1, 12): a(f"v_subrev_f32 v{40+e}, {fbits(float(e)):#x}, v40")
    for k in range(6): a(f"v_cvt_pk_bf16_f32 v{52+k}, |v{40+2*k}|, |v{41+2*k}|")
    for e in range(11):
        sel = "WORD_0" if e % 2 == 0 else "WORD_1"
        a(f"v_lshlrev_b32_sdwa v{60+e}, 2, v{52+e//2} dst_sel:DWORD dst_unused:UNUSED_PAD src0_sel:DWORD src1_sel:{sel}")
    a(f"v_max_u32 v67, {4*0x3F7F}, v67")
    for e in range(11): a(f"v_add_u32 v{60+e}, {P_TABOFF & 0xffffffff:#x}, v{60+e}")
    for e in range(11): a(f"ds_read_b32 v{72+e}, v{60+e}")
    a("v_cmp_ne_u32 vcc, 255, v38")
    a("s_mov_b32 s54, 0x05040100"); a("s_mov_b32 s55, 0x07060302")
    a("v_lshlrev_b32 v71, 4, v38")
    a("s_waitcnt lgkmcnt(0)")
    for e in (8, 9, 10): a(f"v_cndmask_b32 v{72+e}, 0, v{72+e}, vcc")
    for ch in range(2):
        for sg in range(4):
            b = 84 + 16*ch + 4*sg
            for k in range(4): a(f"v_perm_b32 v{b+k}, v{72+2*k+sg+1}, v{72+2*k+sg}, s{54+ch}")
            a(f"ds_write_b128 v71, {vr(b,4)} offset:{P_KW + ch*P_KCH + sg*P_KCP}")
    a(f"s_cmp_lg_u32 {sw}, 1"); a("s_cbranch_scc1 SSM_NZ1")
    a("v_bfe_u32 v9, v1, 3, 1"); a(f"v_mul_u32_u24 v9, {P_KCH}, v9"); a("v_bfe_u32 v10, v1, 1, 2"); a(f"v_mul_u32_u24 v10, {P_KCP}, v10")
    a("v_add_u32 v9, v9, v10"); a("v_and_b32 v10, 1, v1"); a("v_lshl_add_u32 v9, v10, 4, v9")
    a(f"ds_write_b128 v9, v[12:15] offset:{P_KW + 4096}")
    a.label("SSM_NZ1")
    sbar(a, 250, 252, 3)
    stp.mark()
    a("v_and_b32 v41, 15, v1"); a("v_lshrrev_b32 v42, 4, v1")
    a("v_sub_u32 v43, 3, v41"); a("v_and_b32 v43, 3, v43")
    a(f"v_mul_u32_u24 v40, {P_KCP - 2}, v43"); a("v_lshlrev_b32 v44, 1, v41"); a("v_sub_u32 v40, v40, v44"); a("v_lshl_add_u32 v40, v42, 4, v40")
    a(f"s_mul_i32 s53, {CH}, {P_KCH}"); a(f"s_lshl_b32 s54, {HF}, 8"); a("s_sub_u32 s53, s53, s54"); a(f"s_add_u32 s53, s53, {P_KW + 2*2031 - 64*63}")
    a("v_add_u32 v40, s53, v40")
    a("v_lshlrev_b32 v45, 5, v41"); a("v_lshl_add_u32 v45, v42, 4, v45")
    a(f"s_mul_i32 s53, {CH}, {P_USTR}"); a("s_sub_u32 s53, s53, s54"); a(f"s_add_u32 s53, s53, {P_U0 + 480 - 448 + 256}")
    a("v_add_u32 v45, s53, v45")
    ACC = 48; BF = [80, 112]; AF = 144
    lg = Trk(a, "lgkmcnt")
    def loadB(rr_, st):
        for tp in range(8):
            r = BF[st] + 4*tp
            a(f"ds_read_b128 {vr(r,4)}, v45 offset:{64*(8*tp - rr_ + 7) - 256 + 0}") if 64*(8*tp - rr_ + 7) - 256 >= 0 else None
            lg.issue(vl(r,4))
    def loadA(rr_, q, slot):
        r = AF + 4*slot; off = 64*(63 - 8*q - rr_)
        a(f"ds_read_b64 {vr(r,2)}, v40 offset:{off}"); lg.issue(vl(r,2))
        a(f"ds_read_b64 {vr(r+2,2)}, v40 offset:{off+8}"); lg.issue(vl(r+2,2))
    seq = [(rr_, q) for rr_ in range(4) for q in range(8)]
    loadA(0, 0, 0); loadA(0, 1, 1); loadB(0, 0); loadA(0, 2, 2)
    first = [True]*8
    for n, (rr_, q) in enumerate(seq):
        slot = n % 4; st = rr_ & 1
        if n + 3 < len(seq): loadA(seq[n+3][0], seq[n+3][1], (n+3) % 4)
        if q == 2 and rr_ < 3: loadB(rr_ + 1, st ^ 1)
        ar = AF + 4*slot
        for t in range(q, 8):
            br = BF[st] + 4*(t - q)
            lg.need(vl(ar,4) + vl(br,4))
            c = "0" if first[t] else vr(ACC+4*t,4); first[t] = False
            a(f"v_mfma_f32_16x16x32_bf16 {vr(ACC+4*t,4)}, {vr(ar,4)}, {vr(br,4)}, {c}")
    stp.mark()
    sbar(a, 250, 252, 4)
    a(f"s_lshl_b32 s53, {sw}, 12"); a(f"s_add_u32 s53, s53, {P_KW}")
    a(f"s_xor_b32 s54, {sw}, 1"); a("s_lshl_b32 s54, s54, 12"); a(f"s_add_u32 s54, s54, {P_KW}")
    a("v_lshlrev_b32 v46, 4, v1"); a("v_add_u32 v47, s54, v46"); a("v_add_u32 v46, s53, v46")
    a("v_lshlrev_b32 v144, 1, v41"); a("v_lshrrev_b32 v145, 1, v42"); a("v_add_u32 v144, v144, v145"); a("v_lshlrev_b32 v144, 13, v144")
    a("v_and_b32 v145, 1, v42"); a("v_lshl_add_u32 v144, v145, 3, v144")
    a(f"s_lshl_b32 s53, s{S_CP}, 1"); a(f"s_add_u32 s53, s53, {CH}"); a("s_lshl_b32 s53, s53, 4"); a(f"s_lshl_b32 s54, {HF}, 20"); a("s_add_u32 s76, s53, s54")
    a("v_lshlrev_b32 v146, 5, v41"); a("v_lshl_add_u32 v146, v42, 3, v146")
    a(f"s_mul_i32 s53, {CH}, {P_USTR}"); a(f"s_lshl_b32 s54, {HF}, 11"); a("s_add_u32 s53, s53, s54"); a(f"s_add_u32 s53, s53, {P_U0 + 512}")
    a("v_add_u32 v146, s53, v146")
    a(f"s_cmp_eq_u32 {HF}, 0"); a("s_cbranch_scc0 SSM_X1")
    for k, t in enumerate(range(4, 8)): a(f"ds_write_b128 v46, {vr(ACC+4*t,4)} offset:{1024*k}")
    for t in range(4):
        for i in range(4): a(f"v_mov_b32 v{160+4*t+i}, v{ACC+4*t+i}")
    a("s_branch SSM_X2")
    a.label("SSM_X1")
    for k, t in enumerate(range(0, 4)): a(f"ds_write_b128 v46, {vr(ACC+4*t,4)} offset:{1024*k}")
    for t in range(4):
        for i in range(4): a(f"v_mov_b32 v{160+4*t+i}, v{ACC+16+4*t+i}")
    a.label("SSM_X2")
    sbar(a, 250, 252, 5)
    for k in range(4):
        a(f"ds_read_b128 {vr(80+4*k,4)}, v47 offset:{1024*k}")
        a(f"ds_read_b64 {vr(96+2*k,2)}, v146 offset:{512*k}")
    a("s_waitcnt lgkmcnt(0)")
    for k in range(4):
        y = 160 + 4*k
        for i in range(4): a(f"v_add_f32 v{y+i}, v{y+i}, v{80+4*k+i}")
        a(f"v_cvt_pk_bf16_f32 v104, v{y}, v{y+1}"); a(f"v_cvt_pk_bf16_f32 v105, v{y+2}, v{y+3}")
        for j in range(2):
            u = 96 + 2*k + j
            a(f"v_lshlrev_b32 v106, 16, v{u}"); a(f"v_and_b32 v107, 0xffff0000, v{u}")
            a(f"v_mul_f32 v106, s73, v106"); a(f"v_mul_f32 v107, s73, v107")
            a(f"v_cvt_pk_bf16_f32 v108, v106, v107")
            a(f"v_lshlrev_b32 v106, 16, v108"); a(f"v_and_b32 v107, 0xffff0000, v108")
            a(f"v_lshlrev_b32 v109, 16, v{104+j}"); a(f"v_and_b32 v110, 0xffff0000, v{104+j}")
            a(f"v_add_f32 v106, v106, v109"); a(f"v_add_f32 v107, v107, v110")
            a(f"v_cvt_pk_bf16_f32 v{112+2*k+j}, v106, v107")
        a(f"s_add_u32 s53, s76, {k * 32 * 8192}")
        a(f"buffer_store_dwordx2 {vr(112+2*k,2)}, v144, {sr(S_AT)}, s53 offen sc1")
    a("s_waitcnt vmcnt(0)")
    a(f"s_lshl_b32 s53, {HF}, 9"); a(f"s_lshl_b32 s54, s{S_CP}, 1"); a("s_add_u32 s53, s53, s54"); a(f"s_add_u32 s53, s53, {CH}"); a("s_lshl_b32 s53, s53, 2"); a(f"s_add_u32 s53, s53, {FL_FA}")
    a(f"v_mov_b32 v5, s{S_NONCE}"); a("v_mov_b32 v6, 0")
    a("s_mov_b64 exec, 1")
    a(f"buffer_store_dword v5, v6, {sr(S_FL)}, s53 offen sc1")
    a("s_mov_b64 exec, -1")
    if fc.STAMP:
        a("s_waitcnt vmcnt(0)")
        stp.mark()
        stp.flush()
    a("s_endpgm")

def gen_fused(name):
    a = Asm()
    stp = Stamps(a)
    prologue(a, stp)
    g = stp.fork(); s = stp.fork()
    g_path(a, g)
    s_path(a, s)
    a.label("K_END")
    a("s_endpgm")
    return kernel_head(name) + a.finish() + kernel_desc(name, 256)

if __name__ == "__main__":
    if "--stamp" in sys.argv:
        fc.STAMP = True; sys.argv.remove("--stamp")
    if "--dbgstamp" in sys.argv:
        fc.STAMP = True; fc.DBGSTAMP = True; sys.argv.remove("--dbgstamp")
    for x in list(sys.argv):
        if x.startswith("--delay="): DELAY = int(x[8:]); sys.argv.remove(x)
    hdr = open("cdna_kernels/" + NAME + ".s.ref").read().split("; Override")[0]
    kn = NAME + "_kernel"
    s = hdr + f"; @launch kernel={kn} grid=(256,1,1) block=(512,1,1) lds={LDS_TOTAL}\n"
    s += '.amdgcn_target "amdgcn-amd-amdhsa--gfx950"\n.text\n' + gen_fused(kn)
    open(sys.argv[1], "w").write(s)
```

```python
from asmlib import *
import struct
NAME = "parallel_sum__ssm_conv_s4d__glu_gated_glu__prompt"
L, D, NM, F = 2048, 512, 128, 1376
W_XT = 0
W_AT = 2 << 20
W_HF = 4 << 20
HF_BYTES = 128 * 43 * 1024
W_FL = 10 << 20
FL_FX = 0
FL_FH = 4096
FL_FA = 8192
FL_ST = 16384
FL_BYTES = 65536
LOG2E = 0x3fb8aa3b
NLOG2E = 0xbfb8aa3b
INV2PI = 0x3e22f983
EPS = 0x3727c5ac
def fbits(x): return struct.unpack("<I", struct.pack("<f", x))[0]

S_X, S_WG, S_WU, S_WD, S_HF, S_XT, S_AT, S_OUT, S_FL = 8, 12, 16, 20, 24, 28, 32, 36, 40
S_WAVE, S_RW, S_MT, S_NG, S_U0, S_NONCE, S_CP, S_RB, S_CB = 44, 45, 46, 47, 48, 49, 50, 51, 52
KP = dict(x=56, lar=58, aim=60, cr=62, ci=64, ldt=66, dsk=68, bx=70, wg=72, wu=74, wd=76, out=78, dbg=80, ws=82)

STAMP = False
ASTAMP = False
DBGSTAMP = False
DBGWG = 0
W_STAMP = 64 << 20
_uid = [0]
class Stamps:
    def __init__(self, a):
        self.a = a; self.n = 0
    def mark(self, first=False, kind="n"):
        if not STAMP: return
        if ASTAMP and kind == "n" and self.n >= 2: return
        if not ASTAMP and kind == "a": return
        a = self.a
        a("s_waitcnt lgkmcnt(0)")
        a("s_memtime s[84:85]")
        a("s_waitcnt lgkmcnt(0)")
        a(f"s_mov_b32 s{86 + self.n}, s84")
        if first:
            a("s_memrealtime s[84:85]"); a("s_waitcnt lgkmcnt(0)"); a("s_mov_b32 s98, s84")
        self.n += 1
        assert self.n <= 12
    def fork(self):
        s = Stamps(self.a); s.n = self.n; return s
    def flush(self):
        if not STAMP: return
        a = self.a
        if DBGSTAMP:
            _uid[0] += 1
            lab = f"DS{_uid[0]}"
            a(f"s_cmp_lg_u32 s2, {DBGWG}"); a(f"s_cbranch_scc1 {lab}")
            a(f"s_and_b32 s99, s{S_WAVE}, 3"); a("s_cmp_lg_u32 s99, 0"); a(f"s_cbranch_scc1 {lab}")
            a(f"s_lshr_b32 s99, s{S_WAVE}, 2"); a("s_mul_i32 s99, s99, 28"); a("s_add_u32 s99, s99, 8")
            a("v_mov_b32 v0, s99")
            for i in range(1, min(self.n, 8)):
                a(f"s_sub_u32 s99, s{86+i}, s{86+i-1}") if not (self.n > 8 and i == 7) else a(f"s_sub_u32 s99, s{86+self.n-1}, s{86+i-1}")
                a("v_mov_b32 v1, s99")
                a(f"global_store_dword v0, v1, s[{KP['dbg']}:{KP['dbg']+1}] offset:{4*(i-1)}")
            a("s_waitcnt vmcnt(0)")
            a.label(lab)
            return
        a(f"s_add_u32 s100, s{KP['ws']}, {W_STAMP}")
        a(f"s_addc_u32 s101, s{KP['ws']+1}, 0")
        a(f"s_lshl_b32 s99, s2, 3")
        a(f"s_add_u32 s99, s99, s{S_WAVE}")
        a(f"s_lshl_b32 s99, s99, 6")
        a("s_add_u32 s100, s100, s99"); a("s_addc_u32 s101, s101, 0")
        a("s_memrealtime s[84:85]"); a("s_waitcnt lgkmcnt(0)")
        a("v_mov_b32 v0, 0")
        a("v_mov_b32 v1, s98"); a("global_store_dword v0, v1, s[100:101] offset:56")
        a("v_mov_b32 v1, s84"); a("global_store_dword v0, v1, s[100:101] offset:60")
        for i in range(self.n):
            a(f"v_mov_b32 v1, s{86+i}")
            a(f"global_store_dword v0, v1, s[100:101] offset:{4*i}")
        a("s_waitcnt vmcnt(0)")

def srd(a, s, ptr, nbytes, add=0):
    if add:
        a(f"s_add_u32 s{s}, s{ptr}, {add}")
        a(f"s_addc_u32 s{s+1}, s{ptr+1}, 0")
    else:
        a(f"s_mov_b32 s{s}, s{ptr}")
        a(f"s_mov_b32 s{s+1}, s{ptr+1}")
    a(f"s_mov_b32 s{s+2}, {nbytes}")
    a(f"s_mov_b32 s{s+3}, 0x20000")
def sr(s): return f"s[{s}:{s+3}]"

def round_bf16(a, dst, src):
    a(f"v_cvt_pk_bf16_f32 v{dst}, v{src}, v{src}")
    a(f"v_and_b32 v{dst}, 0xffff0000, v{dst}")

def wave_sum(a, regs, tmp_s):
    for pat in ("quad_perm:[1,0,3,2]", "quad_perm:[2,3,0,1]", "row_half_mirror", "row_mirror"):
        for r in regs:
            a(f"v_add_f32_dpp v{r}, v{r}, v{r} {pat} row_mask:0xf bank_mask:0xf")
    for pat, rm in (("row_bcast:15", "0xa"), ("row_bcast:31", "0xc")):
        for r in regs:
            a(f"v_add_f32_dpp v{r}, v{r}, v{r} {pat} row_mask:{rm} bank_mask:0xf")
    for r, s in zip(regs, tmp_s):
        a(f"v_readlane_b32 s{s}, v{r}, 63")

SPIN_MAX = 200000
def poll(a, voff, vtmp, soff, nwords4=False, errcode=1):
    _uid[0] += 1
    lab = f"POLL{_uid[0]}"
    a(f"s_mov_b32 s53, {SPIN_MAX}")
    a.label(lab)
    if nwords4:
        a(f"buffer_load_dwordx4 v[{vtmp}:{vtmp+3}], v{voff}, {sr(S_FL)}, {soff} offen sc1")
        a("s_waitcnt vmcnt(0)")
        a(f"v_xor_b32 v{vtmp}, s{S_NONCE}, v{vtmp}")
        for i in range(1, 4):
            a(f"v_xor_b32 v{vtmp+i}, s{S_NONCE}, v{vtmp+i}")
        a(f"v_or_b32 v{vtmp}, v{vtmp}, v{vtmp+1}"); a(f"v_or_b32 v{vtmp+2}, v{vtmp+2}, v{vtmp+3}"); a(f"v_or_b32 v{vtmp}, v{vtmp}, v{vtmp+2}")
        a(f"v_cmp_eq_u32 vcc, 0, v{vtmp}")
    else:
        a(f"buffer_load_dword v{vtmp}, v{voff}, {sr(S_FL)}, {soff} offen sc1")
        a("s_waitcnt vmcnt(0)")
        a(f"v_cmp_eq_u32 vcc, s{S_NONCE}, v{vtmp}")
    a("s_cmp_eq_u64 vcc, -1")
    a(f"s_cbranch_scc1 {lab}_OK")
    a("s_sleep 1")
    a("s_sub_u32 s53, s53, 1")
    a("s_cmp_lg_u32 s53, 0")
    a(f"s_cbranch_scc1 {lab}")
    a("v_mov_b32 v%d, %d" % (vtmp, errcode))
    a("v_mov_b32 v%d, 0" % (vtmp + 1))
    a(f"global_store_dword v{vtmp+1}, v{vtmp}, s[{KP['dbg']}:{KP['dbg']+1}] offset:4")
    a.label(f"{lab}_OK")

def sbar(a, vaddr, vtmp, k, nw=4):
    _uid[0] += 1
    lab = f"SBAR{_uid[0]}"
    a("s_waitcnt lgkmcnt(0)")
    a("s_mov_b64 exec, 1")
    a(f"ds_add_u32 v{vaddr}, v{vtmp+1}")
    a("s_mov_b64 exec, -1")
    a(f"s_mov_b32 s53, {SPIN_MAX}")
    a.label(lab)
    a(f"ds_read_b32 v{vtmp}, v{vaddr}")
    a("s_waitcnt lgkmcnt(0)")
    a(f"v_readfirstlane_b32 s54, v{vtmp}")
    a(f"s_cmp_ge_u32 s54, {nw * k}")
    a(f"s_cbranch_scc1 {lab}_OK")
    a("s_sub_u32 s53, s53, 1")
    a("s_cmp_lg_u32 s53, 0")
    a(f"s_cbranch_scc1 {lab}")
    a.label(f"{lab}_OK")
```

```python
import sys
from fused_common import *
import fused_common as fc

SLOT = 40960
NSLOT = 3
T_GEN = 122880; GEN_W = 8704; PITCH = 272
T_RC = 141824
T_MISC = 143872
T_TAB = 143936
TABOFF = T_TAB - 4 * 0x3F7F
T_U = 149600; USTR = 4608
LT = T_U
T_HX = 158816
T_CS = 140288
P_KW = 40960; KCH = 16640; KCP = 4160
P_GEN = 40960
G2_NS = 5
G2_WRING = G2_NS * 4096
LDS_TOTAL = 163840
CODE_BYTES = 40960
DELAY = 0
OPT = dict(prefetch=True, cs=True, kgen=True, kprio=0)

def cmul(d, z, w):
    return [f"v_pk_mul_f32 v[{d}:{d+1}], v[{z}:{z+1}], v[{w}:{w+1}] op_sel:[0,0] op_sel_hi:[1,0]",
            f"v_pk_fma_f32 v[{d}:{d+1}], v[{z}:{z+1}], v[{w}:{w+1}], v[{d}:{d+1}] op_sel:[1,1,0] op_sel_hi:[0,1,1] neg_lo:[0,1,0]"]

def prologue(a, stp, kn):
    a("s_cmp_ge_u32 s2, 256")
    a("s_cbranch_scc1 K_END")
    a("s_load_dwordx16 s[56:71], s[0:1], 0")
    a("s_load_dwordx8 s[72:79], s[0:1], 64")
    a("s_load_dwordx4 s[80:83], s[0:1], 96")
    a("v_and_b32 v1, 63, v0")
    a("v_lshrrev_b32 v2, 6, v0")
    a("s_nop 0")
    a(f"v_readfirstlane_b32 s{S_WAVE}, v2")
    if OPT["prefetch"]:
        a("s_getpc_b64 s[4:5]")
        a.label("PC_REF")
        a(f"s_sub_u32 s4, s4, PC_REF-{kn}"); a("s_subb_u32 s5, s5, 0")
        a(f"s_cmp_ge_u32 s{S_WAVE}, {CODE_BYTES // 8192}"); a("s_cbranch_scc1 NO_CPF")
        a(f"s_lshl_b32 s3, s{S_WAVE}, 13")
        a("v_lshlrev_b32 v3, 7, v1"); a("v_add_u32 v3, s3, v3")
        a("global_load_dword v255, v3, s[4:5]")
        a.label("NO_CPF")
    a(f"s_and_b32 s{S_RW}, s{S_WAVE}, 3")
    a("s_and_b32 s53, s2, 7"); a("s_lshr_b32 s54, s2, 3")
    a(f"s_and_b32 s{S_MT}, s53, 1"); a(f"s_lshl_b32 s{S_MT}, s{S_MT}, 3"); a("s_and_b32 s55, s54, 7"); a(f"s_add_u32 s{S_MT}, s{S_MT}, s55")
    a(f"s_lshr_b32 s{S_NG}, s53, 1"); a(f"s_lshl_b32 s{S_NG}, s{S_NG}, 2"); a("s_lshr_b32 s55, s54, 3"); a(f"s_add_u32 s{S_NG}, s{S_NG}, s55")
    a(f"s_lshl_b32 s{S_U0}, s{S_NG}, 3"); a(f"s_mul_i32 s{S_U0}, s{S_U0}, 21846"); a(f"s_lshr_b32 s{S_U0}, s{S_U0}, 16")
    a(f"s_lshl_b32 s{S_CP}, s53, 5"); a(f"s_add_u32 s{S_CP}, s{S_CP}, s54")
    a(f"s_lshl_b32 s{S_RB}, s53, 2"); a("s_lshr_b32 s55, s54, 3"); a(f"s_add_u32 s{S_RB}, s{S_RB}, s55")
    a(f"s_and_b32 s{S_CB}, s54, 7")
    a("s_waitcnt lgkmcnt(0)")
    srd(a, S_X, KP['x'], L * D * 2)
    srd(a, S_WG, KP['wg'], D * F * 2); srd(a, S_WU, KP['wu'], D * F * 2); srd(a, S_WD, KP['wd'], F * D * 2)
    srd(a, S_HF, KP['ws'], HF_BYTES, W_HF); srd(a, S_XT, KP['ws'], 2 << 20, W_XT); srd(a, S_AT, KP['ws'], 2 << 20, W_AT)
    srd(a, S_OUT, KP['out'], L * D * 2); srd(a, S_FL, KP['ws'], FL_BYTES, W_FL)
    a(f"s_mov_b32 s{S_NONCE}, 0")
    stp.mark(first=True)
    a(f"s_cmp_ge_u32 s{S_WAVE}, 4"); a("s_cbranch_scc1 S_PATH")

def g_path(a, stp):
    gw = f"s{S_RW}"
    a(f"s_lshl_b32 s53, s{S_MT}, 7"); a(f"s_lshl_b32 s54, s{S_NG}, 3"); a("s_add_u32 s53, s53, s54"); a(f"s_lshl_b32 s54, {gw}, 1"); a("s_add_u32 s53, s53, s54")
    a("s_lshl_b32 s53, s53, 10")
    a("v_lshlrev_b32 v3, 4, v1")
    a(f"buffer_load_dwordx4 v[4:7], v3, {sr(S_X)}, s53 offen")
    a(f"buffer_load_dwordx4 v[8:11], v3, {sr(S_X)}, s53 offen offset:1024")
    if OPT["prefetch"]:
        a(f"s_cmp_lg_u32 {gw}, 0"); a("s_cbranch_scc1 G_NPF0")
        a("s_mul_i32 s54, s2, 5504"); a("v_lshlrev_b32 v12, 7, v1")
        a(f"buffer_load_dword v254, v12, {sr(S_WD)}, s54 offen")
        a.label("G_NPF0")
        a(f"s_cmp_lg_u32 {gw}, 1"); a("s_cbranch_scc1 G_NPF1")
        a("v_and_b32 v12, 3, v1"); a("v_lshlrev_b32 v12, 21, v12")
        a(f"buffer_load_dword v254, v12, {sr(S_HF)}, 0 offen")
        a("v_mov_b32 v12, 0")
        a(f"buffer_load_dword v253, v12, {sr(S_AT)}, 0 offen")
        a(f"buffer_load_dword v252, v12, {sr(S_OUT)}, 0 offen")
        a(f"buffer_load_dword v251, v12, {sr(S_FL)}, 0 offen")
        a(f"buffer_load_dword v250, v12, {sr(S_XT)}, 0 offen")
        a.label("G_NPF1")
    a(f"s_lshr_b32 s70, {gw}, 1"); a(f"s_and_b32 s71, {gw}, 1")
    a("v_and_b32 v33, 15, v1"); a("v_lshrrev_b32 v34, 4, v1")
    a("v_lshrrev_b32 v35, 1, v33"); a("v_xor_b32 v35, v35, v34"); a("v_lshlrev_b32 v35, 4, v35")
    a("v_lshl_add_u32 v35, v33, 7, v35")
    a("s_lshl_b32 s54, s70, 13")
    a("v_add_u32 v56, s54, v35")
    a("v_xor_b32 v57, 64, v56")
    a("v_lshrrev_b32 v35, 2, v33"); a("v_lshl_add_u32 v35, v34, 3, v35"); a("v_mul_u32_u24 v35, 192, v35")
    a("v_and_b32 v36, 1, v33"); a("v_lshl_add_u32 v35, v36, 3, v35"); a("v_add_u32 v35, 16384, v35")
    a("v_bfe_u32 v36, v33, 1, 1")
    a("v_and_b32 v37, 1, v34"); a("v_lshlrev_b32 v37, 1, v37")
    a("s_mul_i32 s54, s71, 6")
    for tt in range(3):
        a(f"v_add_u32 v38, s54, v36"); a(f"v_add_u32 v38, {2*tt}, v38"); a("v_xor_b32 v38, v38, v37")
        a(f"v_lshl_add_u32 v{58+tt}, v38, 4, v35")
    a("s_waitcnt vmcnt(5)") if OPT["prefetch"] else None
    a(f"s_cmp_eq_u32 {gw}, 1"); a("s_cbranch_scc1 G_XW")
    a("s_waitcnt vmcnt(1)") if OPT["prefetch"] else None
    a(f"s_cmp_eq_u32 {gw}, 0"); a("s_cbranch_scc1 G_XW")
    a("s_waitcnt vmcnt(0)")
    a.label("G_XW")
    if not OPT["prefetch"]: a("s_waitcnt vmcnt(0)")
    for r in range(2):
        for i in range(4):
            src = 4 + 4 * r + i
            a(f"v_lshlrev_b32 v{12 + 8*r + 2*i}, 16, v{src}")
            a(f"v_and_b32 v{13 + 8*r + 2*i}, 0xffff0000, v{src}")
    for r in range(2):
        b = 12 + 8 * r
        a(f"v_add_f32 v{28+r}, v{b}, v{b+1}")
        for i in range(2, 8): a(f"v_add_f32 v{28+r}, v{28+r}, v{b+i}")
    wave_sum(a, [28, 29], [53, 54])
    a("s_mov_b32 s55, 0x3b000000")
    for r in range(2):
        a(f"v_mov_b32 v{28+r}, s{53+r}"); a(f"v_mul_f32 v{28+r}, s55, v{28+r}")
    for r in range(2):
        b = 12 + 8 * r
        for i in range(8):
            a(f"v_sub_f32 v32, v{b+i}, v{28+r}")
            if i == 0: a(f"v_mul_f32 v{30+r}, v32, v32")
            else: a(f"v_fmac_f32 v{30+r}, v32, v32")
    wave_sum(a, [30, 31], [53, 54])
    for r in range(2):
        a(f"v_mov_b32 v{30+r}, s{53+r}"); a(f"v_mul_f32 v{30+r}, s55, v{30+r}")
        round_bf16(a, 30 + r, 30 + r)
        a(f"v_add_f32 v{30+r}, {EPS:#x}, v{30+r}")
        round_bf16(a, 30 + r, 30 + r)
        a(f"v_sqrt_f32 v{30+r}, v{30+r}")
        round_bf16(a, 30 + r, 30 + r)
        a(f"v_rcp_f32 v{40+r}, v{30+r}")
        round_bf16(a, 28 + r, 28 + r)
    for r in range(2):
        b = 12 + 8 * r
        for i in range(4):
            a(f"v_sub_f32 v{b+2*i}, v{b+2*i}, v{28+r}"); a(f"v_sub_f32 v{b+2*i+1}, v{b+2*i+1}, v{28+r}")
            a(f"v_cvt_pk_bf16_f32 v32, v{b+2*i}, v{b+2*i+1}")
            a(f"v_lshlrev_b32 v33, 16, v32"); a(f"v_and_b32 v34, 0xffff0000, v32")
            a(f"v_mul_f32 v33, v33, v{40+r}"); a(f"v_mul_f32 v34, v34, v{40+r}")
            a(f"v_cvt_pk_bf16_f32 v{4+4*r+i}, v33, v34")
    a(f"s_lshl_b32 s53, {gw}, 11"); a(f"s_add_u32 s53, s53, {LT}")
    a("v_add_u32 v35, s53, v3")
    a("ds_write_b128 v35, v[4:7]"); a("ds_write_b128 v35, v[8:11] offset:1024")
    a("v_mov_b32 v36, v28"); a("v_mov_b32 v37, v30"); a("v_mov_b32 v38, v29"); a("v_mov_b32 v39, v31")
    a(f"s_lshl_b32 s53, {gw}, 4"); a(f"s_add_u32 s53, s53, {LT + 8192}")
    a("v_mov_b32 v35, s53")
    a("s_mov_b64 exec, 1"); a("ds_write_b128 v35, v[36:39]"); a("s_mov_b64 exec, -1")
    for i in range(5): a(f"v_mov_b32 v{16+i}, v{56+i}")
    a("s_waitcnt lgkmcnt(0)")
    a("s_barrier")
    stp.mark()
    ACC = 32; FA = [128, 168]
    def accr(m, tt, j): return ACC + ((m*3 + tt)*4 + j)*4
    lg = Trk(a, "lgkmcnt")
    def set_slot(slot):
        sb = slot * SLOT
        for i in range(5):
            if sb == 0: a(f"v_mov_b32 v{22+i}, v{16+i}")
            else: a(f"v_add_u32 v{22+i}, {sb}, v{16+i}")
    def reads(s2, st):
        b = FA[st]; out = []
        for j in range(4):
            out.append((f"ds_read_b128 {vr(b+24+4*j,4)}, v{22+s2} offset:{2048*j}", vl(b+24+4*j,4)))
        for m in range(2):
            for tt in range(3):
                r = b + (m*3+tt)*4
                for hf in range(2):
                    out.append((f"ds_read_b64_tr_b16 {vr(r+2*hf,2)}, v{24+tt} offset:{m*12288 + s2*6144 + hf*768}", vl(r+2*hf,2)))
        return out
    def mfmas(st, first):
        b = FA[st]; out = []
        for m in range(2):
            for tt in range(3):
                for j in range(4):
                    c = "0" if first else vr(accr(m,tt,j),4)
                    fr = b+(m*3+tt)*4
                    out.append((f"v_mfma_f32_16x16x32_bf16 {vr(accr(m,tt,j),4)}, {vr(fr,4)}, {vr(b+24+4*j,4)}, {c}", vl(fr,4) + vl(b+24+4*j,4), None))
        return out
    def interleave(mf, rd):
        ri = 0
        for n, (txt, deps, dot) in enumerate(mf):
            lg.need(deps); a(txt)
            if ri < len(rd) and n >= 1:
                a(rd[ri][0]); lg.issue(rd[ri][1]); ri += 1
        while ri < len(rd):
            a(rd[ri][0]); lg.issue(rd[ri][1]); ri += 1
    NST = 8
    set_slot(0)
    for (t, r) in reads(0, 0): a(t); lg.issue(r)
    for s in range(NST):
        interleave(mfmas(0, s == 0), reads(1, 1))
        lg.q = []
        a("s_waitcnt lgkmcnt(0)" if s != 4 else "s_waitcnt vmcnt(0) lgkmcnt(0)")
        stp.mark(kind="a")
        a("s_barrier")
        if s + 1 < NST:
            set_slot((s + 1) % NSLOT)
            interleave(mfmas(1, False), reads(0, 0))
        else:
            interleave(mfmas(1, False), [])
    stp.mark()
    a("s_setprio 1")
    a(f"s_mul_i32 s53, {gw}, 11")
    a("v_lshrrev_b32 v4, 3, v1"); a("v_and_b32 v5, 7, v1"); a("v_bfe_u32 v6, v4, 1, 2"); a("v_lshlrev_b32 v6, 1, v6")
    a("v_xor_b32 v5, v5, v6"); a("v_lshlrev_b32 v4, 10, v4"); a("v_lshl_add_u32 v4, v5, 4, v4")
    S_BOFF, S_RING, S_AOFF, S_XOFF = 72, 73, 74, 75
    a(f"s_lshl_b32 s{S_BOFF}, s53, 15"); a(f"s_lshl_b32 s54, s{S_CB}, 7"); a(f"s_add_u32 s{S_BOFF}, s{S_BOFF}, s54")
    a(f"s_and_b32 s54, {gw}, 1"); a(f"s_mul_i32 s{S_RING}, s54, {G2_WRING}"); a(f"s_cmp_lt_u32 {gw}, 2"); a("s_cselect_b32 s54, 81920, 0"); a(f"s_add_u32 s{S_RING}, s{S_RING}, s54")
    a(f"s_lshl_b32 s{S_AOFF}, s{S_RB}, 2"); a(f"s_mul_i32 s{S_AOFF}, s{S_AOFF}, 43"); a(f"s_add_u32 s{S_AOFF}, s{S_AOFF}, s53"); a(f"s_lshl_b32 s{S_AOFF}, s{S_AOFF}, 10")
    vm = Trk(a, "vmcnt")
    def loadB1(step, t):
        slot = step % G2_NS
        a(f"s_add_u32 m0, s{S_RING}, {slot*4096 + t*1024}")
        a(f"s_add_u32 s54, s{S_BOFF}, {step*32768 + t*8192}")
        a(f"buffer_load_dwordx4 v4, {sr(S_WD)}, s54 offen lds"); vm.issue([f"B{step}"])
    def loadB(step):
        for t in range(4): loadB1(step, t)
    RC = 216; CS = 232
    a(f"v_mov_b32 v5, {T_MISC}"); a("ds_read_b32 v6, v5")
    a("v_and_b32 v7, 15, v1"); a("v_lshlrev_b32 v7, 4, v7"); a("s_lshl_b32 s55, s70, 10"); a(f"s_add_u32 s55, s55, {T_RC}"); a("v_add_u32 v7, s55, v7")
    for j in range(4): a(f"ds_read_b128 {vr(RC+4*j,4)}, v7 offset:{256*j}")
    a("v_lshrrev_b32 v8, 4, v1"); a("v_lshlrev_b32 v8, 4, v8"); a("s_mul_i32 s54, s71, 192"); a(f"s_add_u32 s54, s54, {T_CS}"); a("v_add_u32 v8, s54, v8")
    for m in range(2):
        for tt in range(3): a(f"ds_read_b128 {vr(CS+(m*3+tt)*4,4)}, v8 offset:{m*384 + tt*64}")
    a("s_waitcnt lgkmcnt(0)")
    a(f"v_readfirstlane_b32 s{S_NONCE}, v6")
    P = 128
    bc = lambda r: f"v[{r & ~1}:{(r & ~1)+1}]"
    sel = lambda r: r & 1
    for tt in range(3):
        for j in range(4):
            mreg, c1, sreg = RC+4*j, RC+4*j+1, RC+4*j+2
            g = accr(0, tt, j); u = accr(1, tt, j); cg = CS + tt*4; cu = CS + (3+tt)*4
            for h in range(2):
                a(f"v_pk_fma_f32 v[{g+2*h}:{g+2*h+1}], v[{cg+2*h}:{cg+2*h+1}], {bc(mreg)}, v[{g+2*h}:{g+2*h+1}] op_sel:[0,{sel(mreg)},0] op_sel_hi:[1,{sel(mreg)},1] neg_lo:[0,1,0] neg_hi:[0,1,0]")
            for h in range(2):
                a(f"v_pk_mul_f32 v[{g+2*h}:{g+2*h+1}], v[{g+2*h}:{g+2*h+1}], {bc(c1)} op_sel:[0,{sel(c1)}] op_sel_hi:[1,{sel(c1)}]")
            for i in range(2): a(f"v_exp_f32 v{g+i}, v{g+i}")
            a(f"v_pk_fma_f32 v[{u}:{u+1}], v[{cu}:{cu+1}], {bc(mreg)}, v[{u}:{u+1}] op_sel:[0,{sel(mreg)},0] op_sel_hi:[1,{sel(mreg)},1] neg_lo:[0,1,0] neg_hi:[0,1,0]")
            for i in range(2, 4): a(f"v_exp_f32 v{g+i}, v{g+i}")
            a(f"v_pk_fma_f32 v[{u+2}:{u+3}], v[{cu+2}:{cu+3}], {bc(mreg)}, v[{u+2}:{u+3}] op_sel:[0,{sel(mreg)},0] op_sel_hi:[1,{sel(mreg)},1] neg_lo:[0,1,0] neg_hi:[0,1,0]")
            for h in range(2):
                a(f"v_pk_fma_f32 v[{g+2*h}:{g+2*h+1}], v[{g+2*h}:{g+2*h+1}], {bc(sreg)}, {bc(sreg)} op_sel:[0,{sel(sreg)},{sel(sreg)}] op_sel_hi:[1,{sel(sreg)},{sel(sreg)}]")
            for i in range(4): a(f"v_rcp_f32 v{g+i}, v{g+i}")
            for h in range(2):
                a(f"v_pk_mul_f32 v[{g+2*h}:{g+2*h+1}], v[{g+2*h}:{g+2*h+1}], v[{u+2*h}:{u+2*h+1}]")
            for h in range(2):
                a(f"v_cvt_pk_bf16_f32 v{P+j*8+tt*2+h}, v{g+2*h}, v{g+2*h+1}")
        if tt == 0:
            a("s_cmp_eq_u32 s71, 0"); a("s_cbranch_scc1 G_NSEND")
            a(f"s_lshl_b32 s54, s70, 11"); a(f"s_add_u32 s54, s54, {T_HX}")
            a("v_lshlrev_b32 v5, 3, v1"); a("v_add_u32 v5, s54, v5")
            for j in range(4): a(f"ds_write_b64 v5, {vr(P+j*8,2)} offset:{512*j}")
            a("s_lshl_b32 s54, s70, 2"); a(f"s_add_u32 s54, s54, {T_MISC + 8}")
            a("v_mov_b32 v5, s54"); a("v_mov_b32 v6, 1")
            a("s_waitcnt lgkmcnt(0)")
            a("ds_write_b32 v5, v6")
            a.label("G_NSEND")
    stp.mark()
    a(f"s_lshl_b32 s53, s{S_MT}, 3"); a("s_lshl_b32 s54, s70, 2"); a("s_add_u32 s53, s53, s54")
    a("s_mul_i32 s53, s53, 43"); a(f"s_add_u32 s53, s53, s{S_U0}"); a("s_lshl_b32 s53, s53, 10")
    a("v_lshlrev_b32 v3, 4, v1")
    a("s_cmp_eq_u32 s71, 0")
    a("s_cbranch_scc0 G1_FH1")
    for j in range(4):
        a(f"s_add_u32 s54, s53, {j*43*1024}")
        a(f"buffer_store_dwordx4 {vr(P+j*8,4)}, v3, {sr(S_HF)}, s54 offen sc1")
    a("s_lshl_b32 s54, s70, 2"); a(f"s_add_u32 s54, s54, {T_MISC + 8}"); a("v_mov_b32 v5, s54")
    a(f"s_mov_b32 s55, {SPIN_MAX}")
    a.label("G_HXW")
    a("ds_read_b32 v6, v5"); a("s_waitcnt lgkmcnt(0)"); a("v_readfirstlane_b32 s54, v6")
    a("s_cmp_lg_u32 s54, 0"); a("s_cbranch_scc1 G_HXOK")
    a("s_sub_u32 s55, s55, 1"); a("s_cmp_lg_u32 s55, 0"); a("s_cbranch_scc1 G_HXW")
    a.label("G_HXOK")
    a(f"s_lshl_b32 s54, s70, 11"); a(f"s_add_u32 s54, s54, {T_HX}")
    a("v_lshlrev_b32 v5, 3, v1"); a("v_add_u32 v5, s54, v5")
    for j in range(4): a(f"ds_read_b64 {vr(P+j*8+6,2)}, v5 offset:{512*j}")
    a("s_waitcnt lgkmcnt(0)")
    for j in range(4):
        a(f"s_add_u32 s54, s53, {j*43*1024}")
        a(f"buffer_store_dwordx4 {vr(P+j*8+4,4)}, v3, {sr(S_HF)}, s54 offen offset:1024 sc1")
    a("s_branch G1_DONE")
    a.label("G1_FH1")
    for j in range(4):
        a(f"s_add_u32 s54, s53, {j*43*1024}")
        a(f"buffer_store_dwordx4 {vr(P+j*8+2,4)}, v3, {sr(S_HF)}, s54 offen offset:2048 sc1")
    a.label("G1_DONE")
    a("s_waitcnt vmcnt(0)")
    vm.q = []
    a(f"s_lshl_b32 s53, s{S_MT}, 1"); a("s_add_u32 s53, s53, s70"); a("s_lshl_b32 s53, s53, 5"); a(f"s_lshl_b32 s54, s{S_NG}, 1"); a("s_add_u32 s53, s53, s54"); a("s_add_u32 s53, s53, s71")
    a("s_lshl_b32 s53, s53, 2"); a(f"s_add_u32 s53, s53, {FL_FH}")
    a(f"v_mov_b32 v5, s{S_NONCE}"); a("v_mov_b32 v6, 0")
    a("s_mov_b64 exec, 1")
    a(f"buffer_store_dword v5, v6, {sr(S_FL)}, s53 offen sc1")
    a("s_mov_b64 exec, -1")
    stp.mark()
    a("v_and_b32 v5, 15, v1"); a("v_lshrrev_b32 v6, 4, v1")
    a("v_lshrrev_b32 v7, 2, v5"); a("v_lshl_add_u32 v7, v6, 2, v7")
    a("v_bfe_u32 v8, v7, 1, 2"); a("v_lshlrev_b32 v8, 5, v8"); a("v_lshl_add_u32 v8, v7, 7, v8")
    a("v_bfe_u32 v9, v5, 1, 1"); a("v_lshl_add_u32 v8, v9, 4, v8")
    a("v_and_b32 v9, 1, v5"); a("v_lshl_add_u32 v8, v9, 3, v8")
    a(f"v_add_u32 v8, s{S_RING}, v8")
    for nt in range(4): a(f"v_xor_b32 v{10+nt}, {nt<<5}, v8")
    a(f"s_lshl_b32 s53, s{S_RB}, 16"); a(f"s_lshl_b32 s54, {gw}, 14"); a("s_add_u32 s53, s53, s54"); a(f"s_lshl_b32 s54, s{S_CB}, 7"); a(f"s_add_u32 s{S_XOFF}, s53, s54")
    a("v_lshrrev_b32 v15, 2, v1"); a("v_lshlrev_b32 v15, 10, v15"); a("v_and_b32 v9, 3, v1"); a("v_lshl_add_u32 v15, v9, 5, v15")
    a(f"buffer_load_dwordx4 v[224:227], v15, {sr(S_X)}, s{S_XOFF} offen")
    a(f"buffer_load_dwordx4 v[228:231], v15, {sr(S_X)}, s{S_XOFF} offen offset:16")
    a("v_and_b32 v14, 31, v1"); a("v_lshlrev_b32 v14, 2, v14")
    a(f"s_lshl_b32 s55, s{S_RB}, 7"); a(f"s_add_u32 s55, s55, {FL_FH}")
    poll(a, 14, 232, "s55", errcode=2)
    stp.mark()
    NSTEP = 11; AR = 80; ACC2 = 16; BF = [192, 208]
    def loadA(step):
        slot = step % G2_NS
        for j in range(4):
            a(f"s_add_u32 s54, s{S_AOFF}, {j*43*1024 + step*1024}")
            if step == 10:
                a(f"s_cmp_eq_u32 {gw}, 3"); a(f"s_cselect_b32 s54, {HF_BYTES}, s54")
            a(f"buffer_load_dwordx4 {vr(AR + slot*16 + 4*j, 4)}, v3, {sr(S_HF)}, s54 offen sc1"); vm.issue([f"A{step}"])
    for s in range(G2_NS): loadA(s)
    a(f"s_lshl_b32 s54, {gw}, 2"); a(f"s_add_u32 s54, s54, {T_MISC + 16}"); a("v_mov_b32 v232, s54")
    a(f"s_mov_b32 s55, {SPIN_MAX}")
    a.label("G_WDW")
    a("ds_read_b32 v233, v232"); a("s_waitcnt lgkmcnt(0)"); a("v_readfirstlane_b32 s54, v233")
    a("s_cmp_lg_u32 s54, 0"); a("s_cbranch_scc1 G_WDOK")
    a("s_sub_u32 s55, s55, 1"); a("s_cmp_lg_u32 s55, 0"); a("s_cbranch_scc1 G_WDW")
    a.label("G_WDOK")
    lg = Trk(a, "lgkmcnt")
    def breads(step, st):
        slot = step % G2_NS; out = []
        for nt in range(4):
            for hf in range(2):
                r = BF[st] + 4*nt + 2*hf
                out.append((f"ds_read_b64_tr_b16 {vr(r,2)}, v{10+nt} offset:{slot*4096 + hf*2048}", vl(r,2)))
        return out
    for (t, r) in breads(0, 0): a(t); lg.issue(r)
    for step in range(NSTEP):
        st = step & 1; slot = step % G2_NS
        vm.need([f"A{step}"])
        rd = []; n = 0; ri = 0
        for j in range(4):
            for nt in range(4):
                if n == 8 and step + 1 < NSTEP:
                    vm.need([f"B{step+1}"])
                    rd = breads(step + 1, st ^ 1)
                ar = AR + slot*16 + 4*j; br = BF[st] + 4*nt
                lg.need(vl(br, 4))
                c = "0" if step == 0 else vr(ACC2 + (j*4+nt)*4, 4)
                a(f"v_mfma_f32_16x16x32_bf16 {vr(ACC2 + (j*4+nt)*4, 4)}, {vr(ar,4)}, {vr(br,4)}, {c}")
                n += 1
                if ri < len(rd):
                    a(rd[ri][0]); lg.issue(rd[ri][1]); ri += 1
        while ri < len(rd):
            a(rd[ri][0]); lg.issue(rd[ri][1]); ri += 1
        if step + G2_NS < NSTEP:
            loadA(step + G2_NS); loadB(step + G2_NS)
    stp.mark()
    a(f"s_lshr_b32 s53, s{S_RB}, 4"); a("s_lshl_b32 s53, s53, 11"); a(f"s_lshl_b32 s54, s{S_CB}, 8"); a("s_add_u32 s55, s53, s54"); a(f"s_add_u32 s55, s55, {FL_FA}")
    a("v_lshlrev_b32 v14, 2, v1")
    poll(a, 14, 232, "s55", errcode=3)
    a(f"s_lshl_b32 s53, s{S_CB}, 18"); a(f"s_lshl_b32 s54, s{S_RB}, 7"); a("s_add_u32 s53, s53, s54"); a(f"s_lshl_b32 s54, {gw}, 5"); a("s_add_u32 s53, s53, s54")
    a("v_lshlrev_b32 v7, 12, v5"); a("v_lshl_add_u32 v7, v6, 3, v7")
    for nt in range(4):
        a(f"buffer_load_dwordx2 {vr(80+2*nt,2)}, v7, {sr(S_AT)}, s53 offen sc1")
        if nt < 3: a(f"s_add_u32 s53, s53, {16*4096}")
    a("s_waitcnt lgkmcnt(0)")
    a("s_barrier")
    a(f"s_lshl_b32 s54, {gw}, 12")
    a("v_add_u32 v9, s54, v3")
    for j in range(4):
        for nt in range(4):
            a(f"ds_write_b128 v9, {vr(ACC2 + (j*4+nt)*4, 4)} offset:{j*16384 + nt*1024}")
    a("s_waitcnt lgkmcnt(0)")
    a("s_barrier")
    a(f"s_lshl_b32 s54, {gw}, 14")
    a("v_add_u32 v9, s54, v3")
    for src in range(4):
        for nt in range(4):
            a(f"ds_read_b128 {vr(96 + (src*4+nt)*4, 4)}, v9 offset:{src*4096 + nt*1024}")
    a("s_waitcnt lgkmcnt(0)")
    for nt in range(4):
        for i in range(4):
            r = 96 + nt*4 + i
            a(f"v_add_f32 v{r}, v{r}, v{r+16}"); a(f"v_add_f32 v{r+32}, v{r+32}, v{r+48}"); a(f"v_add_f32 v{r}, v{r}, v{r+32}")
    a("s_waitcnt vmcnt(0)")
    a("s_mov_b32 s53, 0x05040100"); a("s_mov_b32 s54, 0x07060302")
    a(f"s_mul_i32 s55, {gw}, 4352"); a(f"s_add_u32 s55, s55, 65536")
    a("v_mul_u32_u24 v9, 1088, v6"); a("v_lshl_add_u32 v9, v5, 2, v9"); a("v_add_u32 v9, s55, v9")
    for nt in range(4):
        r = 96 + nt*4
        a(f"v_cvt_pk_bf16_f32 v{r}, v{r}, v{r+1}"); a(f"v_cvt_pk_bf16_f32 v{r+2}, v{r+2}, v{r+3}")
        at0 = 80 + 2*nt
        a(f"v_perm_b32 v112, v{r}, v{at0}, s53"); a(f"v_perm_b32 v113, v{r}, v{at0}, s54")
        a(f"v_perm_b32 v114, v{r+2}, v{at0+1}, s53"); a(f"v_perm_b32 v115, v{r+2}, v{at0+1}, s54")
        for i in range(4): a(f"ds_write_b32 v9, v{112+i} offset:{i*272 + nt*64}")
    a("v_lshrrev_b32 v9, 2, v1"); a("v_mul_u32_u24 v9, 272, v9"); a("v_and_b32 v10, 3, v1"); a("v_lshl_add_u32 v9, v10, 6, v9"); a("v_add_u32 v9, s55, v9")
    a("s_waitcnt lgkmcnt(0)")
    for q in range(4): a(f"ds_read_b128 {vr(96+4*q,4)}, v9 offset:{16*q}")
    a("s_waitcnt lgkmcnt(0)")
    for q in range(8):
        e0 = 96 + 2*q; e1 = e0 + 1; xr = 224 + q
        a(f"v_lshlrev_b32 v112, 16, v{xr}"); a(f"v_and_b32 v113, 0xffff0000, v{xr}")
        a(f"v_lshlrev_b32 v114, 16, v{e0}"); a(f"v_lshlrev_b32 v115, 16, v{e1}")
        a(f"v_add_f32 v112, v112, v114"); a(f"v_add_f32 v113, v113, v115")
        a(f"v_cvt_pk_bf16_f32 v112, v112, v113")
        a(f"v_lshlrev_b32 v113, 16, v112"); a(f"v_and_b32 v112, 0xffff0000, v112")
        a(f"v_and_b32 v114, 0xffff0000, v{e0}"); a(f"v_and_b32 v115, 0xffff0000, v{e1}")
        a(f"v_add_f32 v113, v113, v114"); a(f"v_add_f32 v112, v112, v115")
        a(f"v_cvt_pk_bf16_f32 v{116+q}, v113, v112")
    a(f"buffer_store_dwordx4 v[116:119], v15, {sr(S_OUT)}, s{S_XOFF} offen")
    a(f"buffer_store_dwordx4 v[120:123], v15, {sr(S_OUT)}, s{S_XOFF} offen offset:16")
    if fc.STAMP:
        a("s_waitcnt vmcnt(0)")
        stp.mark(kind="z")
        stp.flush()
    a("s_endpgm")

def s_path(a, stp):
    sw = f"s{S_RW}"
    a.label("S_PATH")
    a("s_setprio 3")
    CH, HF = "s70", "s71"
    a(f"s_lshr_b32 {CH}, {sw}, 1"); a(f"s_and_b32 {HF}, {sw}, 1")
    vm = Trk(a, "vmcnt")
    a("v_lshrrev_b32 v3, 3, v1"); a("v_and_b32 v4, 7, v1"); a("v_lshrrev_b32 v5, 1, v3")
    a("v_xor_b32 v6, v4, v5"); a("v_xor_b32 v7, 4, v6"); a("v_lshlrev_b32 v3, 10, v3")
    a("v_lshl_add_u32 v10, v6, 4, v3"); a("v_lshl_add_u32 v11, v7, 4, v3")
    for t in range(3):
        a(f"v_add_u32 v3, {64*t}, v1")
        a("v_mul_u32_u24 v4, 5462, v3"); a("v_lshrrev_b32 v4, 16, v4")
        a("v_mul_u32_u24 v5, 12, v4"); a("v_sub_u32 v5, v3, v5")
        a("v_bfe_u32 v6, v4, 3, 1"); a("v_lshlrev_b32 v6, 1, v6"); a("v_xor_b32 v5, v5, v6")
        a("v_mul_u32_u24 v4, 2752, v4")
        a(f"v_lshl_add_u32 v{12+t}, v5, 4, v4")
    a(f"s_lshl_b32 s76, s{S_MT}, 17"); a(f"s_lshl_b32 s53, {sw}, 15"); a("s_add_u32 s76, s76, s53")
    a(f"s_mul_i32 s77, {sw}, 44032"); a(f"s_lshl_b32 s53, s{S_U0}, 6"); a("s_add_u32 s77, s77, s53")
    a(f"s_lshl_b32 s78, {sw}, 12")
    a(f"s_mul_i32 s79, {sw}, 3072"); a("s_add_u32 s79, s79, 16384")
    def dma_stage(stage):
        sb = (stage % NSLOT) * SLOT
        for m in range(2):
            for t in range(3):
                a(f"s_add_u32 m0, s79, {sb + m*12288 + t*1024}")
                if t == 0 and m == 0: a(f"s_add_u32 s53, s77, {stage*64*2752}")
                a(f"buffer_load_dwordx4 v{12+t}, {sr(S_WG + 4*m)}, s53 offen lds"); vm.issue([f"st{stage}"])
        for t in range(4):
            a(f"s_add_u32 m0, s78, {sb + t*1024}")
            a(f"s_add_u32 s53, s76, {t*8192 + stage*128}")
            a(f"buffer_load_dwordx4 v{10 + (t&1)}, {sr(S_X)}, s53 offen lds"); vm.issue([f"st{stage}"])
    for s in range(3): dma_stage(s)
    a(f"s_lshl_b32 s53, s{S_CP}, 9"); a(f"s_lshl_b32 s54, {sw}, 7"); a("s_add_u32 s53, s53, s54")
    a("v_lshlrev_b32 v3, 1, v1"); a("v_add_u32 v3, s53, v3")
    for k, nm in enumerate(("lar", "aim", "cr", "ci")):
        a(f"global_load_ushort v{200+k}, v3, s[{KP[nm]}:{KP[nm]+1}]"); vm.issue(["par"])
    a(f"s_lshl_b32 s54, s{S_CP}, 2")
    a(f"s_add_u32 s72, s{KP['ldt']}, s54"); a(f"s_addc_u32 s73, s{KP['ldt']+1}, 0")
    a(f"s_add_u32 s74, s{KP['dsk']}, s54"); a(f"s_addc_u32 s75, s{KP['dsk']+1}, 0")
    a("s_load_dword s72, s[72:73], 0"); a("s_load_dword s73, s[74:75], 0")
    a("v_and_b32 v3, 15, v1"); a("v_lshrrev_b32 v4, 4, v1")
    a("v_lshrrev_b32 v5, 2, v3"); a("v_lshl_add_u32 v5, v4, 3, v5"); a("v_mul_u32_u24 v5, 192, v5")
    a("v_and_b32 v6, 1, v3"); a("v_lshl_add_u32 v5, v6, 3, v5")
    a(f"s_lshr_b32 s53, {sw}, 1"); a("s_mul_i32 s53, s53, 12288"); a("s_add_u32 s53, s53, 16384"); a("v_add_u32 v5, s53, v5")
    a("v_bfe_u32 v6, v3, 1, 1"); a("v_and_b32 v7, 1, v4"); a("v_lshlrev_b32 v7, 1, v7")
    a(f"s_and_b32 s53, {sw}, 1"); a("s_mul_i32 s53, s53, 6")
    for i in range(3):
        a("v_add_u32 v8, s53, v6"); a(f"v_add_u32 v8, {2*i}, v8"); a("v_xor_b32 v8, v8, v7")
        a(f"v_lshl_add_u32 v{16+i}, v8, 4, v5")
    for i in range(4): a(f"v_mov_b32 v{24+i}, 0x3f803f80")
    vm.need(["st0"])
    a("s_waitcnt lgkmcnt(0)")
    a("s_barrier")
    stp.mark()
    lg = Trk(a, "lgkmcnt")
    def cs_stage(s):
        sb = (s % NSLOT) * SLOT
        for i in range(3): a(f"v_add_u32 v{20+i}, {sb}, v{16+i}") if sb else a(f"v_mov_b32 v{20+i}, v{16+i}")
        for s2 in range(2):
            for i in range(3):
                r = 40 + (s2*3+i)*4
                for hf in range(2):
                    a(f"ds_read_b64_tr_b16 {vr(r+2*hf,2)}, v{20+i} offset:{s2*6144 + hf*768}"); lg.issue(vl(r+2*hf,2))
        for s2 in range(2):
            for i in range(3):
                r = 40 + (s2*3+i)*4
                lg.need(vl(r,4))
                c = "0" if (s == 0 and s2 == 0) else vr(28+4*i,4)
                a(f"v_mfma_f32_16x16x32_bf16 {vr(28+4*i,4)}, {vr(r,4)}, v[24:27], {c}")
    def wd_prefetch():
        a("v_lshrrev_b32 v64, 3, v1"); a("v_and_b32 v65, 7, v1"); a("v_bfe_u32 v66, v64, 1, 2"); a("v_lshlrev_b32 v66, 1, v66")
        a("v_xor_b32 v65, v65, v66"); a("v_lshlrev_b32 v64, 10, v64"); a("v_lshl_add_u32 v64, v65, 4, v64")
        a(f"s_mul_i32 s53, {sw}, 11"); a("s_lshl_b32 s53, s53, 15"); a(f"s_lshl_b32 s54, s{S_CB}, 7"); a("s_add_u32 s53, s53, s54")
        a(f"s_and_b32 s54, {sw}, 1"); a(f"s_mul_i32 s54, s54, {G2_WRING}"); a(f"s_cmp_lt_u32 {sw}, 2"); a("s_cselect_b32 s55, 81920, 0"); a("s_add_u32 s54, s54, s55")
        for step in range(G2_NS):
            for t in range(4):
                a(f"s_add_u32 m0, s54, {step*4096 + t*1024}")
                a(f"s_add_u32 s55, s53, {step*32768 + t*8192}")
                a(f"buffer_load_dwordx4 v64, {sr(S_WD)}, s55 offen lds")
    for s in range(8):
        if s == 0:
            a(f"s_lshl_b32 s53, {sw}, 8"); a(f"s_add_u32 s53, s53, {LT}")
            a("v_lshlrev_b32 v64, 1, v1"); a("v_add_u32 v64, s53, v64")
            for k in range(2):
                for r in range(8):
                    a(f"ds_read_u16 v{80+8*k+r}, v64 offset:{1024*r + 128*k}"); lg.issue([f"v{80+8*k+r}"])
            a(f"v_mov_b32 v65, {LT + 8192}"); a("v_and_b32 v66, 7, v1"); a("v_lshl_add_u32 v65, v66, 3, v65")
            a("ds_read_b64 v[76:77], v65"); lg.issue(["v76", "v77"])
            a(f"s_lshl_b32 s53, s{S_MT}, 4"); a(f"s_add_u32 s53, s53, s{S_NG}"); a("s_lshl_b32 s53, s53, 13"); a(f"s_lshl_b32 s54, {sw}, 11"); a("s_add_u32 s53, s53, s54")
            a("v_lshlrev_b32 v64, 4, v1")
            lg.need(vl(80, 16) + ["v76"])
            for k in range(2):
                for q in range(4): a(f"v_lshl_or_b32 v{68+4*k+q}, v{80+8*k+2*q+1}, 16, v{80+8*k+2*q}")
                a(f"buffer_store_dwordx4 {vr(68+4*k,4)}, v64, {sr(S_XT)}, s53 offen offset:{1024*k} sc1"); vm.issue(["xt"])
            a(f"s_lshl_b32 s53, s{S_MT}, 4"); a(f"s_add_u32 s53, s53, s{S_NG}"); a("s_lshl_b32 s53, s53, 6"); a(f"s_add_u32 s53, s53, {FL_ST}")
            a("v_lshlrev_b32 v66, 3, v66")
            a(f"buffer_store_dwordx2 v[76:77], v66, {sr(S_FL)}, s53 offen sc1"); vm.issue(["xt"])
            a(f"s_cmp_lg_u32 {sw}, 0"); a("s_cbranch_scc1 S_NN")
            a("s_memrealtime s[54:55]"); a("s_waitcnt lgkmcnt(0)"); a("s_or_b32 s54, s54, 1")
            a("v_mov_b32 v208, s54"); a("v_mov_b32 v209, 0"); a("v_mov_b32 v210, 0")
            a("s_mov_b64 exec, 1")
            a(f"global_atomic_cmpswap v211, v210, v[208:209], s[{KP['dbg']}:{KP['dbg']+1}] sc0")
            a("s_mov_b64 exec, -1")
            a.label("S_NN")
        if s == 3:
            a(f"s_cmp_lg_u32 {sw}, 0"); a("s_cbranch_scc1 S_NFX")
            a("v_cmp_eq_u32 vcc, 0, v211"); a("v_cndmask_b32 v211, v211, v208, vcc"); a("s_nop 0")
            a(f"v_readfirstlane_b32 s{S_NONCE}, v211")
            a(f"s_lshl_b32 s53, s{S_MT}, 4"); a(f"s_add_u32 s53, s53, s{S_NG}"); a("s_lshl_b32 s53, s53, 2"); a(f"s_add_u32 s53, s53, {FL_FX}")
            a(f"v_mov_b32 v212, s{S_NONCE}"); a("v_mov_b32 v213, 0")
            a("s_mov_b64 exec, 1"); a(f"buffer_store_dword v212, v213, {sr(S_FL)}, s53 offen sc1"); a("s_mov_b64 exec, -1")
            for k in range(3): pass
            a("v_mov_b32 v214, 0"); a("v_mov_b32 v215, 0"); a(f"v_mov_b32 v216, {T_MISC}"); a("ds_write_b128 v216, v[212:215]")
            a("v_mov_b32 v212, 0"); a("ds_write_b128 v216, v[212:215] offset:16")
            a.label("S_NFX")
        if s == 5:
            a(f"v_mov_b32 v240, {T_MISC}"); a("ds_read_b32 v241, v240"); a("s_waitcnt lgkmcnt(0)"); a(f"v_readfirstlane_b32 s{S_NONCE}, v241")
            lg.q = []
            a("v_lshlrev_b32 v240, 4, v1")
            a(f"buffer_load_dwordx4 v[244:247], v240, {sr(S_FL)}, {FL_FX} offen sc1"); vm.issue(["poll"])
        if s == 6:
            vm.need(["poll"])
            for k in range(4): a(f"v_xor_b32 v{244+k}, s{S_NONCE}, v{244+k}")
            a("v_or_b32 v244, v244, v245"); a("v_or_b32 v246, v246, v247"); a("v_or_b32 v244, v244, v246")
            a("v_cmp_eq_u32 vcc, 0, v244"); a("s_mov_b32 s74, 0"); a("s_cmp_eq_u64 vcc, -1"); a("s_cbranch_scc0 S_NOU")
            a("s_mov_b32 s74, 1")
            a(f"s_lshl_b32 s53, s{S_CP}, 1"); a(f"s_add_u32 s53, s53, {CH}"); a("s_lshl_b32 s53, s53, 4"); a(f"s_lshl_b32 s54, {HF}, 20"); a("s_add_u32 s53, s53, s54")
            a("v_lshlrev_b32 v240, 13, v1")
            a(f"buffer_load_dwordx4 v[220:223], v240, {sr(S_XT)}, s53 offen sc1"); a(f"s_add_u32 s53, s53, {64*8192}")
            a(f"buffer_load_dwordx4 v[224:227], v240, {sr(S_XT)}, s53 offen sc1")
            a.label("S_NOU")
            a(f"s_cmp_lg_u32 {sw}, 0"); a("s_cbranch_scc1 S_NST")
            a("s_cmp_lg_u32 s74, 0"); a("s_cbranch_scc1 S_STOK")
            a("v_and_b32 v240, 15, v1"); a("v_lshlrev_b32 v240, 2, v240")
            a(f"s_lshl_b32 s55, s{S_MT}, 6"); a(f"s_add_u32 s55, s55, {FL_FX}")
            poll(a, 240, 244, "s55", errcode=4)
            a.label("S_STOK")
            a(f"s_lshl_b32 s53, s{S_MT}, 10"); a(f"s_add_u32 s53, s53, {FL_ST}")
            a("v_lshlrev_b32 v240, 4, v1")
            a(f"buffer_load_dwordx4 v[236:239], v240, {sr(S_FL)}, s53 offen sc1")
            a.label("S_NST")
            a(f"s_cmp_ge_u32 {sw}, 2"); a("s_cbranch_scc1 S_NWD0")
            wd_prefetch()
            a.label("S_NWD0")
        if s == 7:
            a(f"s_cmp_lt_u32 {sw}, 2"); a("s_cbranch_scc1 S_NWD1")
            wd_prefetch()
            a.label("S_NWD1")
        cs_stage(s)
        if s == 7:
            a(f"s_mul_i32 s53, {sw}, 192"); a(f"s_add_u32 s53, s53, {T_CS}")
            a("v_lshrrev_b32 v64, 4, v1"); a("v_lshlrev_b32 v64, 4, v64"); a("v_add_u32 v64, s53, v64")
            for i in range(3): a(f"ds_write_b128 v64, {vr(28+4*i,4)} offset:{64*i}")
            a(f"s_cmp_lg_u32 {sw}, 0"); a("s_cbranch_scc1 S_NRC")
            a(f"s_waitcnt vmcnt({4*G2_NS})")
            a("v_rcp_f32 v65, v237"); a("v_rcp_f32 v69, v239")
            a("v_mov_b32 v64, v236"); a("v_mov_b32 v66, v237"); a("v_mov_b32 v67, 0")
            a("v_mov_b32 v68, v238"); a("v_mov_b32 v70, v239"); a("v_mov_b32 v71, 0")
            a(f"v_mul_f32 v65, {NLOG2E:#x}, v65"); a(f"v_mul_f32 v69, {NLOG2E:#x}, v69")
            a("v_lshlrev_b32 v72, 5, v1"); a(f"v_add_u32 v72, {T_RC}, v72")
            a("ds_write_b128 v72, v[64:67]"); a("ds_write_b128 v72, v[68:71] offset:16")
            a.label("S_NRC")
        if s + 1 < 8: vm.need([f"st{s+1}"])
        lg.q = []
        a("s_waitcnt lgkmcnt(0)")
        stp.mark(kind="a")
        a("s_barrier")
        if s + 3 < 8: dma_stage(s + 3)
    stp.mark()
    a("s_setprio 0")
    a(f"v_mov_b32 v250, {T_MISC + 4}"); a("v_mov_b32 v253, 1")
    a("s_lshl_b32 s53, s72, 16"); a("s_and_b32 s54, s72, 0xffff0000")
    a("s_lshl_b32 s76, s73, 16"); a("s_and_b32 s77, s73, 0xffff0000")
    a(f"s_cmp_eq_u32 {CH}, 0"); a("s_cselect_b32 s72, s53, s54"); a("s_cselect_b32 s73, s76, s77")
    a("s_cmp_lg_u32 s74, 0"); a("s_cbranch_scc1 S_UOK")
    a("v_lshlrev_b32 v240, 4, v1")
    poll(a, 240, 244, f"{FL_FX}", nwords4=True, errcode=5)
    a(f"s_lshl_b32 s53, s{S_CP}, 1"); a(f"s_add_u32 s53, s53, {CH}"); a("s_lshl_b32 s53, s53, 4"); a(f"s_lshl_b32 s54, {HF}, 20"); a("s_add_u32 s53, s53, s54")
    a("v_lshlrev_b32 v240, 13, v1")
    a(f"buffer_load_dwordx4 v[220:223], v240, {sr(S_XT)}, s53 offen sc1"); a(f"s_add_u32 s53, s53, {64*8192}")
    a(f"buffer_load_dwordx4 v[224:227], v240, {sr(S_XT)}, s53 offen sc1")
    a.label("S_UOK")
    a(f"s_mov_b32 s74, {LOG2E}")
    a("v_mov_b32 v9, s72"); a("v_mul_f32 v9, s74, v9"); a("v_exp_f32 v9, v9")
    round_bf16(a, 9, 9)
    for k in range(4): a(f"v_lshlrev_b32 v{4+k}, 16, v{200+k}")
    a("v_mul_f32 v4, s74, v4"); a("v_exp_f32 v4, v4")
    round_bf16(a, 4, 4)
    a("v_mul_f32 v4, v4, v9"); a("v_mul_f32 v4, s74, v4")
    a("v_mul_f32 v5, v5, v9"); a(f"v_mul_f32 v5, {INV2PI:#x}, v5")
    a("v_add_f32 v9, v9, v9")
    a("v_mul_f32 v16, v6, v9"); a("v_mul_f32 v17, v7, v9")
    for (dst, mult) in ((18, 1.0), (20, 8.0), (22, 128.0)):
        a(f"v_mul_f32 v10, {fbits(mult):#x}, v4"); a(f"v_mul_f32 v11, {fbits(mult):#x}, v5")
        a("v_exp_f32 v10, -v10"); a("v_fract_f32 v11, v11")
        a(f"v_cos_f32 v{dst}, v11"); a(f"v_sin_f32 v{dst+1}, v11")
        a(f"v_mul_f32 v{dst}, v{dst}, v10"); a(f"v_mul_f32 v{dst+1}, v{dst+1}, v10")
    for s_ in cmul(24, 18, 18): a(s_)
    for s_ in cmul(26, 24, 24): a(s_)
    a(f"s_mul_i32 s76, {sw}, {GEN_W}"); a(f"s_add_u32 s76, s76, {P_GEN}")
    a("v_lshlrev_b32 v28, 2, v1"); a("v_add_u32 v28, s76, v28")
    a("v_and_b32 v29, 15, v1"); a(f"v_mul_u32_u24 v29, {PITCH}, v29"); a("v_lshrrev_b32 v30, 4, v1"); a("v_lshl_add_u32 v29, v30, 4, v29"); a("v_add_u32 v29, s76, v29")
    def emit_row(pair, row, neg_im=False, tmp=None):
        n = "-" if neg_im else ""
        return [f"v_cvt_pk_bf16_f32 v{tmp}, v{pair}, {n}v{pair+1}", f"ds_write_b32 v28, v{tmp} offset:{row * PITCH}"]
    def rr(*streams):
        idx = [0] * len(streams)
        while any(idx[i] < len(s) for i, s in enumerate(streams)):
            for i, s in enumerate(streams):
                if idx[i] < len(s): a(s[idx[i]]); idx[i] += 1
    def Mreg(h): return 22 if h == 1 else 40 + 2 * h
    BFR = 72; AFR = 88; KACC = 136
    def kmfma(tt, with_b):
        a("s_waitcnt lgkmcnt(0)")
        if with_b:
            for ks in range(4): a(f"ds_read_b128 {vr(BFR+4*ks,4)}, v29 offset:{16*PITCH + 64*ks}")
        for ks in range(4): a(f"ds_read_b128 {vr(AFR+4*ks,4)}, v29 offset:{64*ks}")
        a("s_waitcnt lgkmcnt(0)")
        for ks in range(4):
            c = "0" if ks == 0 else vr(KACC+4*tt,4)
            a(f"v_mfma_f32_16x16x32_bf16 {vr(KACC+4*tt,4)}, {vr(AFR+4*ks,4)}, {vr(BFR+4*ks,4)}, {c}")
    sB = emit_row(16, 16, True, tmp=35); prev = 16
    for l in range(1, 16):
        d = 60 + 2 * (l & 1); sB += cmul(d, prev, 20) + emit_row(d, 16 + l, True, tmp=35); prev = d
    sC = ["v_mov_b32 v36, 0x3f80", "ds_write_b32 v28, v36 offset:0"] + emit_row(18, 1, tmp=36) + emit_row(24, 2, tmp=36); prev = 24
    for r in range(3, 8):
        d = 64 + 2 * (r & 1); sC += cmul(d, prev, 18) + emit_row(d, r, tmp=36); prev = d
    sE = emit_row(22, 8, tmp=34); prev = 22
    for r in range(1, 8):
        d = 68 + 2 * (r & 1); sE += cmul(d, prev, 18) + emit_row(d, 8 + r, tmp=34); prev = d
    sM = []
    for h in range(2, 8): sM += cmul(Mreg(h), Mreg(h - 1), 22)
    rr(sB, sC, sE, sM)
    kmfma(0, True)
    s1 = emit_row(Mreg(2), 0, tmp=34); prev = Mreg(2)
    for r in range(1, 4):
        d = 60 + 2 * (r & 1); s1 += cmul(d, prev, 24) + emit_row(d, r, tmp=34); prev = d
    s2 = emit_row(Mreg(3), 4, tmp=35); prev = Mreg(3)
    for r in range(1, 4):
        d = 64 + 2 * (r & 1); s2 += cmul(d, prev, 24) + emit_row(d, 4 + r, tmp=35); prev = d
    s3 = []
    for h in range(4, 8):
        d = 68 + 2 * (h & 1); s3 += emit_row(Mreg(h), 8 + 2*(h-4), tmp=36) + cmul(d, Mreg(h), 26) + emit_row(d, 9 + 2*(h-4), tmp=36)
    s4 = []; prevM = Mreg(7)
    for h in range(8, 17):
        d = 104 + 2 * (h - 8); s4 += cmul(d, prevM, 22); prevM = d
    rr(s1, s2, s3, s4)
    kmfma(1, False)
    s5 = []
    for h in range(8, 17): s5 += emit_row(104 + 2 * (h - 8), h - 8, tmp=34 + (h & 1))
    rr(s5)
    kmfma(2, False)
    stp.mark()
    a("s_waitcnt vmcnt(0)")
    a(f"s_lshl_b32 s53, {sw}, 2"); a(f"s_add_u32 s53, s53, {T_MISC + 16}"); a("v_mov_b32 v30, s53"); a("ds_write_b32 v30, v253")
    a(f"s_mul_i32 s53, {CH}, {USTR}"); a(f"s_lshl_b32 s54, {HF}, 11"); a("s_add_u32 s53, s53, s54"); a(f"s_add_u32 s53, s53, {T_U + 512}")
    a("v_lshlrev_b32 v39, 4, v1"); a("v_add_u32 v39, s53, v39")
    a("ds_write_b128 v39, v[220:223]"); a("ds_write_b128 v39, v[224:227] offset:1024")
    a(f"s_cmp_lg_u32 {HF}, 0"); a("s_cbranch_scc1 SSM_NZ0")
    a("v_mov_b32 v12, 0"); a("v_mov_b32 v13, 0"); a("v_mov_b32 v14, 0"); a("v_mov_b32 v15, 0")
    a("v_subrev_u32 v39, 512, v39")
    a("s_mov_b32 exec_hi, 0"); a("ds_write_b128 v39, v[12:15]"); a("s_mov_b64 exec, -1")
    a.label("SSM_NZ0")
    a("v_lshlrev_b32 v30, 2, v1"); a("v_add_u32 v31, s76, v30")
    a(f"s_xor_b32 s53, {sw}, 1"); a(f"s_mul_i32 s53, s53, {GEN_W}"); a(f"s_add_u32 s53, s53, {P_GEN}"); a("v_add_u32 v32, s53, v30")
    a("v_and_b32 v40, 15, v1"); a("v_lshlrev_b32 v40, 3, v40"); a("v_lshrrev_b32 v41, 4, v1")
    a("v_lshrrev_b32 v42, 1, v41"); a("v_lshlrev_b32 v42, 7, v42"); a("v_and_b32 v43, 1, v41"); a("v_lshl_add_u32 v42, v43, 2, v42"); a("v_add_u32 v42, v42, v40")
    a("v_cmp_gt_u32 vcc, 2, v41")
    a("v_lshlrev_b32 v43, 7, v41"); a("v_add_u32 v43, 256, v43"); a("v_lshlrev_b32 v44, 8, v41")
    a("v_cndmask_b32 v43, v44, v43, vcc"); a("v_add_u32 v43, v43, v40")
    for i, (x, y) in enumerate(((2, 4), (4, 128), (6, 132))):
        a(f"v_mov_b32 v{48+i}, {y}"); a(f"v_mov_b32 v{52+i}, {x}"); a(f"v_cndmask_b32 v{48+i}, v{48+i}, v{52+i}, vcc")
    a("v_lshlrev_b32 v44, 9, v41"); a("v_add_u32 v44, 1024, v44"); a("v_add_u32 v44, v44, v40")
    a(f"s_lshl_b32 s77, {CH}, 1"); a(f"s_add_u32 s77, s77, {TABOFF:#x}")
    def finalize(send, plist):
        for kk, r in enumerate(send): a(f"ds_write_b32 v31, v{KACC+r} offset:{256*kk}")
        for kk, c in enumerate(plist): a(c.replace("PD", f"v{64+kk}"))
        for kk in range(6):
            a(f"v_cvt_f32_u32 v{64+kk}, v{64+kk}"); a(f"v_lshrrev_b32 v{64+kk}, 14, v{64+kk}"); a(f"v_max_u32 v{64+kk}, {4*0x3F7F}, v{64+kk}")
    a(f"s_cmp_eq_u32 {HF}, 0"); a("s_cbranch_scc0 SSM_HF1a")
    finalize(range(6, 12), [f"v_add_u32 PD, {i}, v42" for i in range(4)] + ["v_mov_b32 PD, v43", "v_add_u32 PD, v43, v48"])
    for kk in range(6):
        a(f"v_add_u32 v{64+kk}, s77, v{64+kk}"); a(f"v_mov_b32 v{56+kk}, v{KACC+kk}")
    a("s_branch SSM_HFXa")
    a.label("SSM_HF1a")
    finalize(range(0, 6), ["v_add_u32 PD, v43, v49", "v_add_u32 PD, v43, v50"] + [f"v_add_u32 PD, {128*i}, v44" for i in range(4)])
    a(f"v_mov_b32 v70, {T_MISC + 32}"); a(f"s_mov_b32 s53, {0x45000000 >> 14}")
    for kk in range(6):
        if kk >= 2: a(f"v_cmp_ge_u32 vcc, s53, v{64+kk}")
        a(f"v_add_u32 v{64+kk}, s77, v{64+kk}")
        if kk >= 2: a(f"v_cndmask_b32 v{64+kk}, v70, v{64+kk}, vcc")
        a(f"v_mov_b32 v{56+kk}, v{KACC+6+kk}")
    a.label("SSM_HFXa")
    sbar(a, 250, 252, 1)
    for kk in range(6): a(f"ds_read_b32 v{72+kk}, v32 offset:{256*kk}")
    a("s_waitcnt lgkmcnt(0)")
    for kk in range(6):
        a(f"v_add_f32 v{56+kk}, v{56+kk}, v{72+kk}"); a(f"v_cvt_pk_bf16_f32 v{56+kk}, v{56+kk}, v{56+kk}")
    for kk in range(6): a(f"ds_write_b16 v{64+kk}, v{56+kk}")
    a(f"s_lshl_b32 s53, {sw}, 6"); a("v_add_u32 v38, s53, v1")
    a("v_lshlrev_b32 v40, 3, v38"); a("v_sub_u32 v40, 2047, v40"); a("v_cvt_f32_i32 v40, v40")
    for e in range(1, 12): a(f"v_subrev_f32 v{40+e}, {fbits(float(e)):#x}, v40")
    for k in range(6): a(f"v_cvt_pk_bf16_f32 v{52+k}, |v{40+2*k}|, |v{41+2*k}|")
    for e in range(11):
        sel = "WORD_0" if e % 2 == 0 else "WORD_1"
        a(f"v_lshlrev_b32_sdwa v{60+e}, 2, v{52+e//2} dst_sel:DWORD dst_unused:UNUSED_PAD src0_sel:DWORD src1_sel:{sel}")
    a(f"v_max_u32 v67, {4*0x3F7F}, v67")
    for e in range(11): a(f"v_add_u32 v{60+e}, {TABOFF:#x}, v{60+e}")
    sbar(a, 250, 252, 2)
    stp.mark()
    for e in range(11): a(f"ds_read_b32 v{72+e}, v{60+e}")
    a("v_cmp_ne_u32 vcc, 255, v38")
    a("s_mov_b32 s54, 0x05040100"); a("s_mov_b32 s55, 0x07060302")
    a("v_lshlrev_b32 v71, 4, v38"); a(f"v_add_u32 v71, {P_KW}, v71")
    a("s_waitcnt lgkmcnt(0)")
    for e in (8, 9, 10): a(f"v_cndmask_b32 v{72+e}, 0, v{72+e}, vcc")
    for ch in range(2):
        for sg in range(4):
            b = 84 + 16*ch + 4*sg
            for k in range(4): a(f"v_perm_b32 v{b+k}, v{72+2*k+sg+1}, v{72+2*k+sg}, s{54+ch}")
            a(f"ds_write_b128 v71, {vr(b,4)} offset:{ch*KCH + sg*KCP}")
    a(f"s_cmp_lg_u32 {sw}, 1"); a("s_cbranch_scc1 SSM_NZ1")
    a("v_mov_b32 v12, 0"); a("v_mov_b32 v13, 0"); a("v_mov_b32 v14, 0"); a("v_mov_b32 v15, 0")
    a("v_bfe_u32 v9, v1, 3, 1"); a(f"v_mul_u32_u24 v9, {KCH}, v9"); a("v_bfe_u32 v10, v1, 1, 2"); a(f"v_mul_u32_u24 v10, {KCP}, v10")
    a("v_add_u32 v9, v9, v10"); a("v_and_b32 v10, 1, v1"); a("v_lshl_add_u32 v9, v10, 4, v9"); a(f"v_add_u32 v9, {P_KW + 4096}, v9")
    a(f"ds_write_b128 v9, v[12:15]")
    a.label("SSM_NZ1")
    sbar(a, 250, 252, 3)
    stp.mark()
    a("v_and_b32 v41, 15, v1"); a("v_lshrrev_b32 v42, 4, v1")
    a("v_sub_u32 v43, 3, v41"); a("v_and_b32 v43, 3, v43")
    a(f"v_mul_u32_u24 v40, {KCP - 2}, v43"); a("v_lshlrev_b32 v44, 1, v41"); a("v_sub_u32 v40, v40, v44"); a("v_lshl_add_u32 v40, v42, 4, v40")
    a(f"s_mul_i32 s53, {CH}, {KCH}"); a(f"s_lshl_b32 s54, {HF}, 8"); a("s_sub_u32 s53, s53, s54"); a(f"s_add_u32 s53, s53, {P_KW + 2*2031 - 64*63}")
    a("v_add_u32 v40, s53, v40")
    a("v_lshlrev_b32 v45, 5, v41"); a("v_lshl_add_u32 v45, v42, 4, v45")
    a(f"s_mul_i32 s53, {CH}, {USTR}"); a("s_sub_u32 s53, s53, s54"); a(f"s_add_u32 s53, s53, {T_U + 480 - 448}")
    a("v_add_u32 v45, s53, v45")
    ACC = 48; BF = [80, 112]; AF = 144
    lg = Trk(a, "lgkmcnt")
    def loadB(rr_, st):
        for tp in range(8):
            r = BF[st] + 4*tp
            a(f"ds_read_b128 {vr(r,4)}, v45 offset:{64*(8*tp - rr_ + 7)}"); lg.issue(vl(r,4))
    def loadA(rr_, q, slot):
        r = AF + 4*slot; off = 64*(63 - 8*q - rr_)
        a(f"ds_read_b64 {vr(r,2)}, v40 offset:{off}"); lg.issue(vl(r,2))
        a(f"ds_read_b64 {vr(r+2,2)}, v40 offset:{off+8}"); lg.issue(vl(r+2,2))
    seq = [(rr_, q) for rr_ in range(4) for q in range(8)]
    loadA(0, 0, 0); loadA(0, 1, 1); loadB(0, 0); loadA(0, 2, 2)
    first = [True]*8
    for n, (rr_, q) in enumerate(seq):
        slot = n % 4; st = rr_ & 1
        if n + 3 < len(seq): loadA(seq[n+3][0], seq[n+3][1], (n+3) % 4)
        if q == 2 and rr_ < 3: loadB(rr_ + 1, st ^ 1)
        ar = AF + 4*slot
        for t in range(q, 8):
            br = BF[st] + 4*(t - q)
            lg.need(vl(ar,4) + vl(br,4))
            c = "0" if first[t] else vr(ACC+4*t,4); first[t] = False
            a(f"v_mfma_f32_16x16x32_bf16 {vr(ACC+4*t,4)}, {vr(ar,4)}, {vr(br,4)}, {c}")
    stp.mark()
    sbar(a, 250, 252, 4)
    a(f"s_lshl_b32 s53, {sw}, 12"); a(f"s_add_u32 s53, s53, {P_KW}")
    a(f"s_xor_b32 s54, {sw}, 1"); a("s_lshl_b32 s54, s54, 12"); a(f"s_add_u32 s54, s54, {P_KW}")
    a("v_lshlrev_b32 v46, 4, v1"); a("v_add_u32 v47, s54, v46"); a("v_add_u32 v46, s53, v46")
    a("v_lshlrev_b32 v144, 5, v41"); a("v_lshl_add_u32 v144, v42, 3, v144")
    a(f"s_lshl_b32 s53, s{S_CP}, 1"); a(f"s_add_u32 s53, s53, {CH}"); a("s_lshl_b32 s53, s53, 12"); a(f"s_lshl_b32 s54, {HF}, 11"); a("s_add_u32 s76, s53, s54")
    a(f"s_mul_i32 s53, {CH}, {USTR}"); a(f"s_lshl_b32 s54, {HF}, 11"); a("s_add_u32 s53, s53, s54"); a(f"s_add_u32 s53, s53, {T_U + 512}")
    a("v_add_u32 v146, s53, v144")
    a(f"s_cmp_eq_u32 {HF}, 0"); a("s_cbranch_scc0 SSM_X1")
    for k, t in enumerate(range(4, 8)): a(f"ds_write_b128 v46, {vr(ACC+4*t,4)} offset:{1024*k}")
    for t in range(4):
        for i in range(4): a(f"v_mov_b32 v{160+4*t+i}, v{ACC+4*t+i}")
    a("s_branch SSM_X2")
    a.label("SSM_X1")
    for k, t in enumerate(range(0, 4)): a(f"ds_write_b128 v46, {vr(ACC+4*t,4)} offset:{1024*k}")
    for t in range(4):
        for i in range(4): a(f"v_mov_b32 v{160+4*t+i}, v{ACC+16+4*t+i}")
    a.label("SSM_X2")
    sbar(a, 250, 252, 5)
    for k in range(4):
        a(f"ds_read_b128 {vr(80+4*k,4)}, v47 offset:{1024*k}")
        a(f"ds_read_b64 {vr(96+2*k,2)}, v146 offset:{512*k}")
    a("s_waitcnt lgkmcnt(0)")
    for k in range(4):
        y = 160 + 4*k
        for i in range(4): a(f"v_add_f32 v{y+i}, v{y+i}, v{80+4*k+i}")
        a(f"v_cvt_pk_bf16_f32 v104, v{y}, v{y+1}"); a(f"v_cvt_pk_bf16_f32 v105, v{y+2}, v{y+3}")
        for j in range(2):
            u = 96 + 2*k + j
            a(f"v_lshlrev_b32 v106, 16, v{u}"); a(f"v_and_b32 v107, 0xffff0000, v{u}")
            a(f"v_mul_f32 v106, s73, v106"); a(f"v_mul_f32 v107, s73, v107")
            a(f"v_cvt_pk_bf16_f32 v108, v106, v107")
            a(f"v_lshlrev_b32 v106, 16, v108"); a(f"v_and_b32 v107, 0xffff0000, v108")
            a(f"v_lshlrev_b32 v109, 16, v{104+j}"); a(f"v_and_b32 v110, 0xffff0000, v{104+j}")
            a(f"v_add_f32 v106, v106, v109"); a(f"v_add_f32 v107, v107, v110")
            a(f"v_cvt_pk_bf16_f32 v{112+2*k+j}, v106, v107")
        a(f"buffer_store_dwordx2 {vr(112+2*k,2)}, v144, {sr(S_AT)}, s76 offen offset:{512*k} sc1")
    a("s_waitcnt vmcnt(0)")
    a(f"s_lshl_b32 s53, {HF}, 9"); a(f"s_lshl_b32 s54, s{S_CP}, 1"); a("s_add_u32 s53, s53, s54"); a(f"s_add_u32 s53, s53, {CH}"); a("s_lshl_b32 s53, s53, 2"); a(f"s_add_u32 s53, s53, {FL_FA}")
    a(f"v_mov_b32 v5, s{S_NONCE}"); a("v_mov_b32 v6, 0")
    a("s_mov_b64 exec, 1")
    a(f"buffer_store_dword v5, v6, {sr(S_FL)}, s53 offen sc1")
    a("s_mov_b64 exec, -1")
    if fc.STAMP:
        a("s_waitcnt vmcnt(0)")
        stp.mark(kind="z")
        stp.flush()
    a("s_endpgm")

def gen_fused(name):
    a = Asm()
    stp = Stamps(a)
    prologue(a, stp, name)
    g = stp.fork(); k = stp.fork()
    g_path(a, g)
    s_path(a, k)
    a.label("K_END")
    a("s_endpgm")
    return kernel_head(name) + a.finish() + kernel_desc(name, 256)

if __name__ == "__main__":
    if "--stamp" in sys.argv:
        fc.STAMP = True; sys.argv.remove("--stamp")
    if "--astamp" in sys.argv:
        fc.STAMP = True; fc.ASTAMP = True; sys.argv.remove("--astamp")
    if "--dbgstamp" in sys.argv:
        fc.STAMP = True; fc.DBGSTAMP = True; sys.argv.remove("--dbgstamp")
    for x in list(sys.argv):
        if x.startswith("--opt="):
            k, v = x[6:].split(":"); OPT[k] = int(v); sys.argv.remove(x)
    if "--nopf" in sys.argv:
        OPT["prefetch"] = False; sys.argv.remove("--nopf")
    TABOFF &= 0xffffffff
    hdr = open("cdna_kernels/" + NAME + ".s.ref").read().split("; Override")[0]
    kn = NAME + "_kernel"
    s = hdr + f"; @launch kernel={kn} grid=(256,1,1) block=(512,1,1) lds={LDS_TOTAL}\n"
    s += '.amdgcn_target "amdgcn-amd-amdhsa--gfx950"\n.text\n' + gen_fused(kn)
    open(sys.argv[1], "w").write(s)
```

```python
import sys
from fused_common import *
import fused_common as fc

SLOT = 40960
NSLOT = 3
T_GEN = 122880; GEN_W = 8704; PITCH = 272
T_RC = 141824
T_MISC = 143872
T_TAB = 143936
TABOFF = T_TAB - 4 * 0x3F7F
T_U = 149600; USTR = 4608
LT = T_U
T_HX = 158816
T_CS = 140288
P_KW = 40960; KCH = 16640; KCP = 4160
P_GEN = 81920
T_EXK = 122880
G2_NS = 5
G2_WRING = G2_NS * 4096
LDS_TOTAL = 163840
CODE_BYTES = 40960
DELAY = 0
OPT = dict(prefetch=True, cs=True, kgen=True, kprio=0)

def cmul(d, z, w):
    return [f"v_pk_mul_f32 v[{d}:{d+1}], v[{z}:{z+1}], v[{w}:{w+1}] op_sel:[0,0] op_sel_hi:[1,0]",
            f"v_pk_fma_f32 v[{d}:{d+1}], v[{z}:{z+1}], v[{w}:{w+1}], v[{d}:{d+1}] op_sel:[1,1,0] op_sel_hi:[0,1,1] neg_lo:[0,1,0]"]

def prologue(a, stp, kn):
    a("s_cmp_ge_u32 s2, 256")
    a("s_cbranch_scc1 K_END")
    a("s_load_dwordx16 s[56:71], s[0:1], 0")
    a("s_load_dwordx8 s[72:79], s[0:1], 64")
    a("s_load_dwordx4 s[80:83], s[0:1], 96")
    a("v_and_b32 v1, 63, v0")
    a("v_lshrrev_b32 v2, 6, v0")
    a("s_nop 0")
    a(f"v_readfirstlane_b32 s{S_WAVE}, v2")
    if OPT["prefetch"]:
        a("s_getpc_b64 s[4:5]")
        a.label("PC_REF")
        a(f"s_sub_u32 s4, s4, PC_REF-{kn}"); a("s_subb_u32 s5, s5, 0")
        a(f"s_cmp_ge_u32 s{S_WAVE}, {CODE_BYTES // 8192}"); a("s_cbranch_scc1 NO_CPF")
        a(f"s_lshl_b32 s3, s{S_WAVE}, 13")
        a("v_lshlrev_b32 v3, 7, v1"); a("v_add_u32 v3, s3, v3")
        a("global_load_dword v255, v3, s[4:5]")
        a.label("NO_CPF")
    a(f"s_and_b32 s{S_RW}, s{S_WAVE}, 3")
    a("s_and_b32 s53, s2, 7"); a("s_lshr_b32 s54, s2, 3")
    a(f"s_and_b32 s{S_MT}, s53, 1"); a(f"s_lshl_b32 s{S_MT}, s{S_MT}, 3"); a("s_and_b32 s55, s54, 7"); a(f"s_add_u32 s{S_MT}, s{S_MT}, s55")
    a(f"s_lshr_b32 s{S_NG}, s53, 1"); a(f"s_lshl_b32 s{S_NG}, s{S_NG}, 2"); a("s_lshr_b32 s55, s54, 3"); a(f"s_add_u32 s{S_NG}, s{S_NG}, s55")
    a(f"s_lshl_b32 s{S_U0}, s{S_NG}, 3"); a(f"s_mul_i32 s{S_U0}, s{S_U0}, 21846"); a(f"s_lshr_b32 s{S_U0}, s{S_U0}, 16")
    a(f"s_lshl_b32 s{S_CP}, s53, 5"); a(f"s_add_u32 s{S_CP}, s{S_CP}, s54")
    a(f"s_lshl_b32 s{S_RB}, s53, 2"); a("s_lshr_b32 s55, s54, 3"); a(f"s_add_u32 s{S_RB}, s{S_RB}, s55")
    a(f"s_and_b32 s{S_CB}, s54, 7")
    a("s_waitcnt lgkmcnt(0)")
    srd(a, S_X, KP['x'], L * D * 2)
    srd(a, S_WG, KP['wg'], D * F * 2); srd(a, S_WU, KP['wu'], D * F * 2); srd(a, S_WD, KP['wd'], F * D * 2)
    srd(a, S_HF, KP['ws'], HF_BYTES, W_HF); srd(a, S_XT, KP['ws'], 2 << 20, W_XT); srd(a, S_AT, KP['ws'], 2 << 20, W_AT)
    srd(a, S_OUT, KP['out'], L * D * 2); srd(a, S_FL, KP['ws'], FL_BYTES, W_FL)
    a(f"s_mov_b32 s{S_NONCE}, 0")
    stp.mark(first=True)
    a(f"s_cmp_ge_u32 s{S_WAVE}, 4"); a("s_cbranch_scc1 S_PATH")

def g_path(a, stp):
    gw = f"s{S_RW}"
    a(f"s_lshl_b32 s53, s{S_MT}, 7"); a(f"s_lshl_b32 s54, s{S_NG}, 3"); a("s_add_u32 s53, s53, s54"); a(f"s_lshl_b32 s54, {gw}, 1"); a("s_add_u32 s53, s53, s54")
    a("s_lshl_b32 s53, s53, 10")
    a("v_lshlrev_b32 v3, 4, v1")
    a(f"s_lshl_b32 s54, s{S_CP}, 9"); a(f"s_lshl_b32 s55, {gw}, 7"); a("s_add_u32 s54, s54, s55")
    a("v_lshlrev_b32 v12, 1, v1"); a("v_add_u32 v12, s54, v12")
    for k, nm in enumerate(("lar", "aim", "cr", "ci")):
        a(f"global_load_ushort v{200+k}, v12, s[{KP[nm]}:{KP[nm]+1}]")
    a(f"s_lshl_b32 s54, s{S_CP}, 2")
    a(f"s_add_u32 s72, s{KP['ldt']}, s54"); a(f"s_addc_u32 s73, s{KP['ldt']+1}, 0")
    a("s_load_dword s72, s[72:73], 0")
    a(f"buffer_load_dwordx4 v[4:7], v3, {sr(S_X)}, s53 offen")
    a(f"buffer_load_dwordx4 v[8:11], v3, {sr(S_X)}, s53 offen offset:1024")
    if OPT["prefetch"]:
        a(f"s_and_b32 s54, s{S_NG}, 3"); a("s_lshl_b32 s54, s54, 15"); a(f"s_lshl_b32 s55, s{S_MT}, 17"); a("s_add_u32 s54, s54, s55"); a(f"s_lshl_b32 s55, {gw}, 13"); a("s_add_u32 s54, s54, s55")
        a("v_lshlrev_b32 v12, 7, v1")
        a(f"buffer_load_dword v249, v12, {sr(S_X)}, s54 offen")
        a(f"s_and_b32 s54, s{S_MT}, 7"); a("s_mul_i32 s54, s54, 176128"); a(f"s_lshl_b32 s55, s{S_U0}, 6"); a("s_add_u32 s54, s54, s55")
        a(f"s_and_b32 s55, {gw}, 1"); a("s_lshl_b32 s55, s55, 7"); a("s_add_u32 s54, s54, s55")
        a("v_mul_u32_u24 v12, 2752, v1")
        a(f"s_cmp_lt_u32 {gw}, 2")
        for q in range(4): a(f"s_cselect_b32 s{76+q}, s{S_WG+q}, s{S_WU+q}")
        a(f"buffer_load_dword v248, v12, s[76:79], s54 offen")
        a(f"s_cmp_lg_u32 {gw}, 0"); a("s_cbranch_scc1 G_NPF0")
        a("s_mul_i32 s54, s2, 5504"); a("v_lshlrev_b32 v12, 7, v1")
        a(f"buffer_load_dword v254, v12, {sr(S_WD)}, s54 offen")
        a.label("G_NPF0")
        a(f"s_cmp_lg_u32 {gw}, 1"); a("s_cbranch_scc1 G_NPF1")
        a("v_and_b32 v12, 3, v1"); a("v_lshlrev_b32 v12, 21, v12")
        a(f"buffer_load_dword v254, v12, {sr(S_HF)}, 0 offen")
        a("v_mov_b32 v12, 0")
        a(f"buffer_load_dword v253, v12, {sr(S_AT)}, 0 offen")
        a(f"buffer_load_dword v252, v12, {sr(S_OUT)}, 0 offen")
        a(f"buffer_load_dword v251, v12, {sr(S_FL)}, 0 offen")
        a(f"buffer_load_dword v250, v12, {sr(S_XT)}, 0 offen")
        a.label("G_NPF1")
    a(f"s_lshr_b32 s70, {gw}, 1"); a(f"s_and_b32 s71, {gw}, 1")
    a("v_and_b32 v33, 15, v1"); a("v_lshrrev_b32 v34, 4, v1")
    a("v_lshrrev_b32 v35, 1, v33"); a("v_xor_b32 v35, v35, v34"); a("v_lshlrev_b32 v35, 4, v35")
    a("v_lshl_add_u32 v35, v33, 7, v35")
    a("s_lshl_b32 s54, s70, 13")
    a("v_add_u32 v56, s54, v35")
    a("v_xor_b32 v57, 64, v56")
    a("v_lshrrev_b32 v35, 2, v33"); a("v_lshl_add_u32 v35, v34, 3, v35"); a("v_mul_u32_u24 v35, 192, v35")
    a("v_and_b32 v36, 1, v33"); a("v_lshl_add_u32 v35, v36, 3, v35"); a("v_add_u32 v35, 16384, v35")
    a("v_bfe_u32 v36, v33, 1, 1")
    a("v_and_b32 v37, 1, v34"); a("v_lshlrev_b32 v37, 1, v37")
    a("s_mul_i32 s54, s71, 6")
    for tt in range(3):
        a(f"v_add_u32 v38, s54, v36"); a(f"v_add_u32 v38, {2*tt}, v38"); a("v_xor_b32 v38, v38, v37")
        a(f"v_lshl_add_u32 v{58+tt}, v38, 4, v35")
    a("s_waitcnt vmcnt(7)") if OPT["prefetch"] else None
    a(f"s_cmp_eq_u32 {gw}, 1"); a("s_cbranch_scc1 G_XW")
    a("s_waitcnt vmcnt(3)") if OPT["prefetch"] else None
    a(f"s_cmp_eq_u32 {gw}, 0"); a("s_cbranch_scc1 G_XW")
    a("s_waitcnt vmcnt(2)") if OPT["prefetch"] else None
    a.label("G_XW")
    if not OPT["prefetch"]: a("s_waitcnt vmcnt(0)")
    for r in range(2):
        for i in range(4):
            src = 4 + 4 * r + i
            a(f"v_lshlrev_b32 v{12 + 8*r + 2*i}, 16, v{src}")
            a(f"v_and_b32 v{13 + 8*r + 2*i}, 0xffff0000, v{src}")
    for r in range(2):
        b = 12 + 8 * r
        a(f"v_add_f32 v{28+r}, v{b}, v{b+1}")
        for i in range(2, 8): a(f"v_add_f32 v{28+r}, v{28+r}, v{b+i}")
    wave_sum(a, [28, 29], [53, 54])
    a("s_mov_b32 s55, 0x3b000000")
    for r in range(2):
        a(f"v_mov_b32 v{28+r}, s{53+r}"); a(f"v_mul_f32 v{28+r}, s55, v{28+r}")
    for r in range(2):
        b = 12 + 8 * r
        for i in range(8):
            a(f"v_sub_f32 v32, v{b+i}, v{28+r}")
            if i == 0: a(f"v_mul_f32 v{30+r}, v32, v32")
            else: a(f"v_fmac_f32 v{30+r}, v32, v32")
    wave_sum(a, [30, 31], [53, 54])
    for r in range(2):
        a(f"v_mov_b32 v{30+r}, s{53+r}"); a(f"v_mul_f32 v{30+r}, s55, v{30+r}")
        round_bf16(a, 30 + r, 30 + r)
        a(f"v_add_f32 v{30+r}, {EPS:#x}, v{30+r}")
        round_bf16(a, 30 + r, 30 + r)
        a(f"v_sqrt_f32 v{30+r}, v{30+r}")
        round_bf16(a, 30 + r, 30 + r)
        a(f"v_rcp_f32 v{40+r}, v{30+r}")
        round_bf16(a, 28 + r, 28 + r)
    for r in range(2):
        b = 12 + 8 * r
        for i in range(4):
            a(f"v_sub_f32 v{b+2*i}, v{b+2*i}, v{28+r}"); a(f"v_sub_f32 v{b+2*i+1}, v{b+2*i+1}, v{28+r}")
            a(f"v_cvt_pk_bf16_f32 v32, v{b+2*i}, v{b+2*i+1}")
            a(f"v_lshlrev_b32 v33, 16, v32"); a(f"v_and_b32 v34, 0xffff0000, v32")
            a(f"v_mul_f32 v33, v33, v{40+r}"); a(f"v_mul_f32 v34, v34, v{40+r}")
            a(f"v_cvt_pk_bf16_f32 v{4+4*r+i}, v33, v34")
    a(f"s_lshl_b32 s53, {gw}, 11"); a(f"s_add_u32 s53, s53, {LT}")
    a("v_add_u32 v35, s53, v3")
    a("ds_write_b128 v35, v[4:7]"); a("ds_write_b128 v35, v[8:11] offset:1024")
    a("v_mov_b32 v36, v28"); a("v_mov_b32 v37, v30"); a("v_mov_b32 v38, v29"); a("v_mov_b32 v39, v31")
    a(f"s_lshl_b32 s53, {gw}, 4"); a(f"s_add_u32 s53, s53, {LT + 8192}")
    a("v_mov_b32 v35, s53")
    a("s_mov_b64 exec, 1"); a("ds_write_b128 v35, v[36:39]"); a("s_mov_b64 exec, -1")
    for i in range(5): a(f"v_mov_b32 v{214+i}, v{56+i}")
    CH, HF = "s70", "s71"
    a("s_waitcnt lgkmcnt(0)")
    a("s_lshl_b32 s53, s72, 16"); a("s_and_b32 s54, s72, 0xffff0000")
    a(f"s_cmp_eq_u32 {CH}, 0"); a("s_cselect_b32 s72, s53, s54")
    a(f"s_mov_b32 s74, {LOG2E}")
    a("v_mov_b32 v9, s72"); a("v_mul_f32 v9, s74, v9"); a("v_exp_f32 v9, v9")
    round_bf16(a, 9, 9)
    for k in range(4): a(f"v_lshlrev_b32 v{4+k}, 16, v{200+k}")
    a("v_mul_f32 v4, s74, v4"); a("v_exp_f32 v4, v4")
    round_bf16(a, 4, 4)
    a("v_mul_f32 v4, v4, v9"); a("v_mul_f32 v4, s74, v4")
    a("v_mul_f32 v5, v5, v9"); a(f"v_mul_f32 v5, {INV2PI:#x}, v5")
    a("v_add_f32 v9, v9, v9")
    a("v_mul_f32 v16, v6, v9"); a("v_mul_f32 v17, v7, v9")
    for (dst, mult) in ((18, 1.0), (20, 8.0), (22, 128.0)):
        a(f"v_mul_f32 v10, {fbits(mult):#x}, v4"); a(f"v_mul_f32 v11, {fbits(mult):#x}, v5")
        a("v_exp_f32 v10, -v10"); a("v_fract_f32 v11, v11")
        a(f"v_cos_f32 v{dst}, v11"); a(f"v_sin_f32 v{dst+1}, v11")
        a(f"v_mul_f32 v{dst}, v{dst}, v10"); a(f"v_mul_f32 v{dst+1}, v{dst+1}, v10")
    for s_ in cmul(24, 18, 18): a(s_)
    for s_ in cmul(26, 24, 24): a(s_)
    a(f"s_mul_i32 s76, {gw}, {GEN_W}"); a(f"s_add_u32 s76, s76, {P_GEN}")
    a("v_lshlrev_b32 v28, 2, v1"); a("v_add_u32 v28, s76, v28")
    a("v_and_b32 v29, 15, v1"); a(f"v_mul_u32_u24 v29, {PITCH}, v29"); a("v_lshrrev_b32 v30, 4, v1"); a("v_lshl_add_u32 v29, v30, 4, v29"); a("v_add_u32 v29, s76, v29")
    def emit_row(pair, row, neg_im=False, tmp=None):
        n = "-" if neg_im else ""
        return [f"v_cvt_pk_bf16_f32 v{tmp}, v{pair}, {n}v{pair+1}", f"ds_write_b32 v28, v{tmp} offset:{row * PITCH}"]
    def rr(*streams):
        idx = [0] * len(streams)
        while any(idx[i] < len(s) for i, s in enumerate(streams)):
            for i, s in enumerate(streams):
                if idx[i] < len(s): a(s[idx[i]]); idx[i] += 1
    def Mreg(h): return 22 if h == 1 else 40 + 2 * h
    BFR = 72; AFR = 88; KACC = 136
    def kmfma(tt, with_b):
        a("s_waitcnt lgkmcnt(0)")
        if with_b:
            for ks in range(4): a(f"ds_read_b128 {vr(BFR+4*ks,4)}, v29 offset:{16*PITCH + 64*ks}")
        for ks in range(4): a(f"ds_read_b128 {vr(AFR+4*ks,4)}, v29 offset:{64*ks}")
        a("s_waitcnt lgkmcnt(0)")
        for ks in range(4):
            c = "0" if ks == 0 else vr(KACC+4*tt,4)
            a(f"v_mfma_f32_16x16x32_bf16 {vr(KACC+4*tt,4)}, {vr(AFR+4*ks,4)}, {vr(BFR+4*ks,4)}, {c}")
    sB = emit_row(16, 16, True, tmp=35); prev = 16
    for l in range(1, 16):
        d = 60 + 2 * (l & 1); sB += cmul(d, prev, 20) + emit_row(d, 16 + l, True, tmp=35); prev = d
    sC = ["v_mov_b32 v36, 0x3f80", "ds_write_b32 v28, v36 offset:0"] + emit_row(18, 1, tmp=36) + emit_row(24, 2, tmp=36); prev = 24
    for r in range(3, 8):
        d = 64 + 2 * (r & 1); sC += cmul(d, prev, 18) + emit_row(d, r, tmp=36); prev = d
    sE = emit_row(22, 8, tmp=34); prev = 22
    for r in range(1, 8):
        d = 68 + 2 * (r & 1); sE += cmul(d, prev, 18) + emit_row(d, 8 + r, tmp=34); prev = d
    sM = []
    for h in range(2, 8): sM += cmul(Mreg(h), Mreg(h - 1), 22)
    rr(sB, sC, sE, sM)
    kmfma(0, True)
    s1 = emit_row(Mreg(2), 0, tmp=34); prev = Mreg(2)
    for r in range(1, 4):
        d = 60 + 2 * (r & 1); s1 += cmul(d, prev, 24) + emit_row(d, r, tmp=34); prev = d
    s2 = emit_row(Mreg(3), 4, tmp=35); prev = Mreg(3)
    for r in range(1, 4):
        d = 64 + 2 * (r & 1); s2 += cmul(d, prev, 24) + emit_row(d, 4 + r, tmp=35); prev = d
    s3 = []
    for h in range(4, 8):
        d = 68 + 2 * (h & 1); s3 += emit_row(Mreg(h), 8 + 2*(h-4), tmp=36) + cmul(d, Mreg(h), 26) + emit_row(d, 9 + 2*(h-4), tmp=36)
    s4 = []; prevM = Mreg(7)
    for h in range(8, 17):
        d = 104 + 2 * (h - 8); s4 += cmul(d, prevM, 22); prevM = d
    rr(s1, s2, s3, s4)
    kmfma(1, False)
    s5 = []
    for h in range(8, 17): s5 += emit_row(104 + 2 * (h - 8), h - 8, tmp=34 + (h & 1))
    rr(s5)
    kmfma(2, False)
    a("v_lshlrev_b32 v30, 2, v1"); a(f"s_mul_i32 s53, {gw}, 1536"); a(f"s_add_u32 s53, s53, {T_EXK}"); a("v_add_u32 v31, s53, v30")
    a(f"s_xor_b32 s53, {gw}, 1"); a(f"s_mul_i32 s53, s53, 1536"); a(f"s_add_u32 s53, s53, {T_EXK}"); a("v_add_u32 v32, s53, v30")
    a("v_and_b32 v40, 15, v1"); a("v_lshlrev_b32 v40, 3, v40"); a("v_lshrrev_b32 v41, 4, v1")
    a("v_lshrrev_b32 v42, 1, v41"); a("v_lshlrev_b32 v42, 7, v42"); a("v_and_b32 v43, 1, v41"); a("v_lshl_add_u32 v42, v43, 2, v42"); a("v_add_u32 v42, v42, v40")
    a("v_cmp_gt_u32 vcc, 2, v41")
    a("v_lshlrev_b32 v43, 7, v41"); a("v_add_u32 v43, 256, v43"); a("v_lshlrev_b32 v44, 8, v41")
    a("v_cndmask_b32 v43, v44, v43, vcc"); a("v_add_u32 v43, v43, v40")
    for i, (x, y) in enumerate(((2, 4), (4, 128), (6, 132))):
        a(f"v_mov_b32 v{48+i}, {y}"); a(f"v_mov_b32 v{52+i}, {x}"); a(f"v_cndmask_b32 v{48+i}, v{48+i}, v{52+i}, vcc")
    a("v_lshlrev_b32 v44, 9, v41"); a("v_add_u32 v44, 1024, v44"); a("v_add_u32 v44, v44, v40")
    a(f"s_lshl_b32 s77, {CH}, 1"); a(f"s_add_u32 s77, s77, {TABOFF:#x}")
    def finalize(send, plist):
        for kk, r in enumerate(send): a(f"ds_write_b32 v31, v{KACC+r} offset:{256*kk}")
        for kk, c in enumerate(plist): a(c.replace("PD", f"v{64+kk}"))
        for kk in range(6):
            a(f"v_cvt_f32_u32 v{64+kk}, v{64+kk}"); a(f"v_lshrrev_b32 v{64+kk}, 14, v{64+kk}"); a(f"v_max_u32 v{64+kk}, {4*0x3F7F}, v{64+kk}")
    a(f"s_cmp_eq_u32 {HF}, 0"); a("s_cbranch_scc0 SSM_HF1a")
    finalize(range(6, 12), [f"v_add_u32 PD, {i}, v42" for i in range(4)] + ["v_mov_b32 PD, v43", "v_add_u32 PD, v43, v48"])
    for kk in range(6):
        a(f"v_add_u32 v{64+kk}, s77, v{64+kk}"); a(f"v_mov_b32 v{56+kk}, v{KACC+kk}")
    a("s_branch SSM_HFXa")
    a.label("SSM_HF1a")
    finalize(range(0, 6), ["v_add_u32 PD, v43, v49", "v_add_u32 PD, v43, v50"] + [f"v_add_u32 PD, {128*i}, v44" for i in range(4)])
    a(f"v_mov_b32 v70, {T_MISC + 32}"); a(f"s_mov_b32 s53, {0x45000000 >> 14}")
    for kk in range(6):
        if kk >= 2: a(f"v_cmp_ge_u32 vcc, s53, v{64+kk}")
        a(f"v_add_u32 v{64+kk}, s77, v{64+kk}")
        if kk >= 2: a(f"v_cndmask_b32 v{64+kk}, v70, v{64+kk}, vcc")
        a(f"v_mov_b32 v{56+kk}, v{KACC+6+kk}")
    a.label("SSM_HFXa")
    for kk in range(6):
        a(f"v_mov_b32 v{224+kk}, v{56+kk}"); a(f"v_mov_b32 v{232+kk}, v{64+kk}")
    a("v_mov_b32 v230, v32")
    for i in range(5): a(f"v_mov_b32 v{16+i}, v{214+i}")
    a("s_waitcnt lgkmcnt(0)")
    a("s_barrier")
    stp.mark()
    for kk in range(6): a(f"ds_read_b32 v{240+kk}, v230 offset:{256*kk}")
    a("s_waitcnt lgkmcnt(0)")
    for kk in range(6):
        a(f"v_add_f32 v{224+kk}, v{224+kk}, v{240+kk}"); a(f"v_cvt_pk_bf16_f32 v{224+kk}, v{224+kk}, v{224+kk}")
    for kk in range(6): a(f"ds_write_b16 v{232+kk}, v{224+kk}")
    ACC = 32; FA = [128, 168]
    def accr(m, tt, j): return ACC + ((m*3 + tt)*4 + j)*4
    lg = Trk(a, "lgkmcnt")
    def set_slot(slot):
        sb = slot * SLOT
        for i in range(5):
            if sb == 0: a(f"v_mov_b32 v{22+i}, v{16+i}")
            else: a(f"v_add_u32 v{22+i}, {sb}, v{16+i}")
    def reads(s2, st):
        b = FA[st]; out = []
        for j in range(4):
            out.append((f"ds_read_b128 {vr(b+24+4*j,4)}, v{22+s2} offset:{2048*j}", vl(b+24+4*j,4)))
        for m in range(2):
            for tt in range(3):
                r = b + (m*3+tt)*4
                for hf in range(2):
                    out.append((f"ds_read_b64_tr_b16 {vr(r+2*hf,2)}, v{24+tt} offset:{m*12288 + s2*6144 + hf*768}", vl(r+2*hf,2)))
        return out
    def mfmas(st, first):
        b = FA[st]; out = []
        for m in range(2):
            for tt in range(3):
                for j in range(4):
                    c = "0" if first else vr(accr(m,tt,j),4)
                    fr = b+(m*3+tt)*4
                    out.append((f"v_mfma_f32_16x16x32_bf16 {vr(accr(m,tt,j),4)}, {vr(fr,4)}, {vr(b+24+4*j,4)}, {c}", vl(fr,4) + vl(b+24+4*j,4), None))
        return out
    def interleave(mf, rd):
        ri = 0
        for n, (txt, deps, dot) in enumerate(mf):
            lg.need(deps); a(txt)
            if ri < len(rd) and n >= 1:
                a(rd[ri][0]); lg.issue(rd[ri][1]); ri += 1
        while ri < len(rd):
            a(rd[ri][0]); lg.issue(rd[ri][1]); ri += 1
    NST = 8
    set_slot(0)
    for (t, r) in reads(0, 0): a(t); lg.issue(r)
    for s in range(NST):
        interleave(mfmas(0, s == 0), reads(1, 1))
        lg.q = []
        a("s_waitcnt lgkmcnt(0)" if s != 4 else "s_waitcnt vmcnt(0) lgkmcnt(0)")
        stp.mark(kind="a")
        a("s_barrier")
        if s + 1 < NST:
            set_slot((s + 1) % NSLOT)
            interleave(mfmas(1, False), reads(0, 0))
        else:
            interleave(mfmas(1, False), [])
    stp.mark()
    a("s_setprio 1")
    a(f"s_mul_i32 s53, {gw}, 11")
    a("v_lshrrev_b32 v4, 3, v1"); a("v_and_b32 v5, 7, v1"); a("v_bfe_u32 v6, v4, 1, 2"); a("v_lshlrev_b32 v6, 1, v6")
    a("v_xor_b32 v5, v5, v6"); a("v_lshlrev_b32 v4, 10, v4"); a("v_lshl_add_u32 v4, v5, 4, v4")
    S_BOFF, S_RING, S_AOFF, S_XOFF = 72, 73, 74, 75
    a(f"s_lshl_b32 s{S_BOFF}, s53, 15"); a(f"s_lshl_b32 s54, s{S_CB}, 7"); a(f"s_add_u32 s{S_BOFF}, s{S_BOFF}, s54")
    a(f"s_and_b32 s54, {gw}, 1"); a(f"s_mul_i32 s{S_RING}, s54, {G2_WRING}"); a(f"s_cmp_lt_u32 {gw}, 2"); a("s_cselect_b32 s54, 81920, 0"); a(f"s_add_u32 s{S_RING}, s{S_RING}, s54")
    a(f"s_lshl_b32 s{S_AOFF}, s{S_RB}, 2"); a(f"s_mul_i32 s{S_AOFF}, s{S_AOFF}, 43"); a(f"s_add_u32 s{S_AOFF}, s{S_AOFF}, s53"); a(f"s_lshl_b32 s{S_AOFF}, s{S_AOFF}, 10")
    vm = Trk(a, "vmcnt")
    def loadB1(step, t):
        slot = step % G2_NS
        a(f"s_add_u32 m0, s{S_RING}, {slot*4096 + t*1024}")
        a(f"s_add_u32 s54, s{S_BOFF}, {step*32768 + t*8192}")
        a(f"buffer_load_dwordx4 v4, {sr(S_WD)}, s54 offen lds"); vm.issue([f"B{step}"])
    def loadB(step):
        for t in range(4): loadB1(step, t)
    RC = 216; CS = 232
    a(f"v_mov_b32 v5, {T_MISC}"); a("ds_read_b32 v6, v5")
    a("v_and_b32 v7, 15, v1"); a("v_lshlrev_b32 v7, 4, v7"); a("s_lshl_b32 s55, s70, 10"); a(f"s_add_u32 s55, s55, {T_RC}"); a("v_add_u32 v7, s55, v7")
    for j in range(4): a(f"ds_read_b128 {vr(RC+4*j,4)}, v7 offset:{256*j}")
    a("v_lshrrev_b32 v8, 4, v1"); a("v_lshlrev_b32 v8, 4, v8"); a("s_mul_i32 s54, s71, 192"); a(f"s_add_u32 s54, s54, {T_CS}"); a("v_add_u32 v8, s54, v8")
    for m in range(2):
        for tt in range(3): a(f"ds_read_b128 {vr(CS+(m*3+tt)*4,4)}, v8 offset:{m*384 + tt*64}")
    a("s_waitcnt lgkmcnt(0)")
    a(f"v_readfirstlane_b32 s{S_NONCE}, v6")
    P = 128
    bc = lambda r: f"v[{r & ~1}:{(r & ~1)+1}]"
    sel = lambda r: r & 1
    for tt in range(3):
        for j in range(4):
            mreg, c1, sreg = RC+4*j, RC+4*j+1, RC+4*j+2
            g = accr(0, tt, j); u = accr(1, tt, j); cg = CS + tt*4; cu = CS + (3+tt)*4
            for h in range(2):
                a(f"v_pk_fma_f32 v[{g+2*h}:{g+2*h+1}], v[{cg+2*h}:{cg+2*h+1}], {bc(mreg)}, v[{g+2*h}:{g+2*h+1}] op_sel:[0,{sel(mreg)},0] op_sel_hi:[1,{sel(mreg)},1] neg_lo:[0,1,0] neg_hi:[0,1,0]")
            for h in range(2):
                a(f"v_pk_mul_f32 v[{g+2*h}:{g+2*h+1}], v[{g+2*h}:{g+2*h+1}], {bc(c1)} op_sel:[0,{sel(c1)}] op_sel_hi:[1,{sel(c1)}]")
            for i in range(2): a(f"v_exp_f32 v{g+i}, v{g+i}")
            a(f"v_pk_fma_f32 v[{u}:{u+1}], v[{cu}:{cu+1}], {bc(mreg)}, v[{u}:{u+1}] op_sel:[0,{sel(mreg)},0] op_sel_hi:[1,{sel(mreg)},1] neg_lo:[0,1,0] neg_hi:[0,1,0]")
            for i in range(2, 4): a(f"v_exp_f32 v{g+i}, v{g+i}")
            a(f"v_pk_fma_f32 v[{u+2}:{u+3}], v[{cu+2}:{cu+3}], {bc(mreg)}, v[{u+2}:{u+3}] op_sel:[0,{sel(mreg)},0] op_sel_hi:[1,{sel(mreg)},1] neg_lo:[0,1,0] neg_hi:[0,1,0]")
            for h in range(2):
                a(f"v_pk_fma_f32 v[{g+2*h}:{g+2*h+1}], v[{g+2*h}:{g+2*h+1}], {bc(sreg)}, {bc(sreg)} op_sel:[0,{sel(sreg)},{sel(sreg)}] op_sel_hi:[1,{sel(sreg)},{sel(sreg)}]")
            for i in range(4): a(f"v_rcp_f32 v{g+i}, v{g+i}")
            for h in range(2):
                a(f"v_pk_mul_f32 v[{g+2*h}:{g+2*h+1}], v[{g+2*h}:{g+2*h+1}], v[{u+2*h}:{u+2*h+1}]")
            for h in range(2):
                a(f"v_cvt_pk_bf16_f32 v{P+j*8+tt*2+h}, v{g+2*h}, v{g+2*h+1}")
        if tt == 0:
            a("s_cmp_eq_u32 s71, 0"); a("s_cbranch_scc1 G_NSEND")
            a(f"s_lshl_b32 s54, s70, 11"); a(f"s_add_u32 s54, s54, {T_HX}")
            a("v_lshlrev_b32 v5, 3, v1"); a("v_add_u32 v5, s54, v5")
            for j in range(4): a(f"ds_write_b64 v5, {vr(P+j*8,2)} offset:{512*j}")
            a("s_lshl_b32 s54, s70, 2"); a(f"s_add_u32 s54, s54, {T_MISC + 8}")
            a("v_mov_b32 v5, s54"); a("v_mov_b32 v6, 1")
            a("s_waitcnt lgkmcnt(0)")
            a("ds_write_b32 v5, v6")
            a.label("G_NSEND")
    stp.mark()
    a(f"s_lshl_b32 s53, s{S_MT}, 3"); a("s_lshl_b32 s54, s70, 2"); a("s_add_u32 s53, s53, s54")
    a("s_mul_i32 s53, s53, 43"); a(f"s_add_u32 s53, s53, s{S_U0}"); a("s_lshl_b32 s53, s53, 10")
    a("v_lshlrev_b32 v3, 4, v1")
    a("s_cmp_eq_u32 s71, 0")
    a("s_cbranch_scc0 G1_FH1")
    for j in range(4):
        a(f"s_add_u32 s54, s53, {j*43*1024}")
        a(f"buffer_store_dwordx4 {vr(P+j*8,4)}, v3, {sr(S_HF)}, s54 offen sc1")
    a("s_lshl_b32 s54, s70, 2"); a(f"s_add_u32 s54, s54, {T_MISC + 8}"); a("v_mov_b32 v5, s54")
    a(f"s_mov_b32 s55, {SPIN_MAX}")
    a.label("G_HXW")
    a("ds_read_b32 v6, v5"); a("s_waitcnt lgkmcnt(0)"); a("v_readfirstlane_b32 s54, v6")
    a("s_cmp_lg_u32 s54, 0"); a("s_cbranch_scc1 G_HXOK")
    a("s_sub_u32 s55, s55, 1"); a("s_cmp_lg_u32 s55, 0"); a("s_cbranch_scc1 G_HXW")
    a.label("G_HXOK")
    a(f"s_lshl_b32 s54, s70, 11"); a(f"s_add_u32 s54, s54, {T_HX}")
    a("v_lshlrev_b32 v5, 3, v1"); a("v_add_u32 v5, s54, v5")
    for j in range(4): a(f"ds_read_b64 {vr(P+j*8+6,2)}, v5 offset:{512*j}")
    a("s_waitcnt lgkmcnt(0)")
    for j in range(4):
        a(f"s_add_u32 s54, s53, {j*43*1024}")
        a(f"buffer_store_dwordx4 {vr(P+j*8+4,4)}, v3, {sr(S_HF)}, s54 offen offset:1024 sc1")
    a("s_branch G1_DONE")
    a.label("G1_FH1")
    for j in range(4):
        a(f"s_add_u32 s54, s53, {j*43*1024}")
        a(f"buffer_store_dwordx4 {vr(P+j*8+2,4)}, v3, {sr(S_HF)}, s54 offen offset:2048 sc1")
    a.label("G1_DONE")
    a("s_waitcnt vmcnt(0)")
    vm.q = []
    a(f"s_lshl_b32 s53, s{S_MT}, 1"); a("s_add_u32 s53, s53, s70"); a("s_lshl_b32 s53, s53, 5"); a(f"s_lshl_b32 s54, s{S_NG}, 1"); a("s_add_u32 s53, s53, s54"); a("s_add_u32 s53, s53, s71")
    a("s_lshl_b32 s53, s53, 2"); a(f"s_add_u32 s53, s53, {FL_FH}")
    a(f"v_mov_b32 v5, s{S_NONCE}"); a("v_mov_b32 v6, 0")
    a("s_mov_b64 exec, 1")
    a(f"buffer_store_dword v5, v6, {sr(S_FL)}, s53 offen sc1")
    a("s_mov_b64 exec, -1")
    stp.mark()
    a("v_and_b32 v5, 15, v1"); a("v_lshrrev_b32 v6, 4, v1")
    a("v_lshrrev_b32 v7, 2, v5"); a("v_lshl_add_u32 v7, v6, 2, v7")
    a("v_bfe_u32 v8, v7, 1, 2"); a("v_lshlrev_b32 v8, 5, v8"); a("v_lshl_add_u32 v8, v7, 7, v8")
    a("v_bfe_u32 v9, v5, 1, 1"); a("v_lshl_add_u32 v8, v9, 4, v8")
    a("v_and_b32 v9, 1, v5"); a("v_lshl_add_u32 v8, v9, 3, v8")
    a(f"v_add_u32 v8, s{S_RING}, v8")
    for nt in range(4): a(f"v_xor_b32 v{10+nt}, {nt<<5}, v8")
    a(f"s_lshl_b32 s53, s{S_RB}, 16"); a(f"s_lshl_b32 s54, {gw}, 14"); a("s_add_u32 s53, s53, s54"); a(f"s_lshl_b32 s54, s{S_CB}, 7"); a(f"s_add_u32 s{S_XOFF}, s53, s54")
    a("v_lshrrev_b32 v15, 2, v1"); a("v_lshlrev_b32 v15, 10, v15"); a("v_and_b32 v9, 3, v1"); a("v_lshl_add_u32 v15, v9, 5, v15")
    a(f"buffer_load_dwordx4 v[224:227], v15, {sr(S_X)}, s{S_XOFF} offen")
    a(f"buffer_load_dwordx4 v[228:231], v15, {sr(S_X)}, s{S_XOFF} offen offset:16")
    a("v_and_b32 v14, 31, v1"); a("v_lshlrev_b32 v14, 2, v14")
    a(f"s_lshl_b32 s55, s{S_RB}, 7"); a(f"s_add_u32 s55, s55, {FL_FH}")
    poll(a, 14, 232, "s55", errcode=2)
    stp.mark()
    NSTEP = 11; AR = 80; ACC2 = 16; BF = [192, 208]
    def loadA(step):
        slot = step % G2_NS
        for j in range(4):
            a(f"s_add_u32 s54, s{S_AOFF}, {j*43*1024 + step*1024}")
            if step == 10:
                a(f"s_cmp_eq_u32 {gw}, 3"); a(f"s_cselect_b32 s54, {HF_BYTES}, s54")
            a(f"buffer_load_dwordx4 {vr(AR + slot*16 + 4*j, 4)}, v3, {sr(S_HF)}, s54 offen sc1"); vm.issue([f"A{step}"])
    for s in range(G2_NS): loadA(s)
    a(f"s_lshl_b32 s54, {gw}, 2"); a(f"s_add_u32 s54, s54, {T_MISC + 16}"); a("v_mov_b32 v232, s54")
    a(f"s_mov_b32 s55, {SPIN_MAX}")
    a.label("G_WDW")
    a("ds_read_b32 v233, v232"); a("s_waitcnt lgkmcnt(0)"); a("v_readfirstlane_b32 s54, v233")
    a("s_cmp_lg_u32 s54, 0"); a("s_cbranch_scc1 G_WDOK")
    a("s_sub_u32 s55, s55, 1"); a("s_cmp_lg_u32 s55, 0"); a("s_cbranch_scc1 G_WDW")
    a.label("G_WDOK")
    lg = Trk(a, "lgkmcnt")
    def breads(step, st):
        slot = step % G2_NS; out = []
        for nt in range(4):
            for hf in range(2):
                r = BF[st] + 4*nt + 2*hf
                out.append((f"ds_read_b64_tr_b16 {vr(r,2)}, v{10+nt} offset:{slot*4096 + hf*2048}", vl(r,2)))
        return out
    for (t, r) in breads(0, 0): a(t); lg.issue(r)
    for step in range(NSTEP):
        st = step & 1; slot = step % G2_NS
        vm.need([f"A{step}"])
        rd = []; n = 0; ri = 0
        for j in range(4):
            for nt in range(4):
                if n == 8 and step + 1 < NSTEP:
                    vm.need([f"B{step+1}"])
                    rd = breads(step + 1, st ^ 1)
                ar = AR + slot*16 + 4*j; br = BF[st] + 4*nt
                lg.need(vl(br, 4))
                c = "0" if step == 0 else vr(ACC2 + (j*4+nt)*4, 4)
                a(f"v_mfma_f32_16x16x32_bf16 {vr(ACC2 + (j*4+nt)*4, 4)}, {vr(ar,4)}, {vr(br,4)}, {c}")
                n += 1
                if ri < len(rd):
                    a(rd[ri][0]); lg.issue(rd[ri][1]); ri += 1
        while ri < len(rd):
            a(rd[ri][0]); lg.issue(rd[ri][1]); ri += 1
        if step + G2_NS < NSTEP:
            loadA(step + G2_NS); loadB(step + G2_NS)
    stp.mark()
    a(f"s_lshr_b32 s53, s{S_RB}, 4"); a("s_lshl_b32 s53, s53, 11"); a(f"s_lshl_b32 s54, s{S_CB}, 8"); a("s_add_u32 s55, s53, s54"); a(f"s_add_u32 s55, s55, {FL_FA}")
    a("v_lshlrev_b32 v14, 2, v1")
    poll(a, 14, 232, "s55", errcode=3)
    a(f"s_lshl_b32 s53, s{S_CB}, 18"); a(f"s_lshl_b32 s54, s{S_RB}, 7"); a("s_add_u32 s53, s53, s54"); a(f"s_lshl_b32 s54, {gw}, 5"); a("s_add_u32 s53, s53, s54")
    a("v_lshlrev_b32 v7, 12, v5"); a("v_lshl_add_u32 v7, v6, 3, v7")
    for nt in range(4):
        a(f"buffer_load_dwordx2 {vr(80+2*nt,2)}, v7, {sr(S_AT)}, s53 offen sc1")
        if nt < 3: a(f"s_add_u32 s53, s53, {16*4096}")
    a("s_waitcnt lgkmcnt(0)")
    a("s_barrier")
    a(f"s_lshl_b32 s54, {gw}, 12")
    a("v_add_u32 v9, s54, v3")
    for j in range(4):
        for nt in range(4):
            a(f"ds_write_b128 v9, {vr(ACC2 + (j*4+nt)*4, 4)} offset:{j*16384 + nt*1024}")
    a("s_waitcnt lgkmcnt(0)")
    a("s_barrier")
    a(f"s_lshl_b32 s54, {gw}, 14")
    a("v_add_u32 v9, s54, v3")
    for src in range(4):
        for nt in range(4):
            a(f"ds_read_b128 {vr(96 + (src*4+nt)*4, 4)}, v9 offset:{src*4096 + nt*1024}")
    a("s_waitcnt lgkmcnt(0)")
    for nt in range(4):
        for i in range(4):
            r = 96 + nt*4 + i
            a(f"v_add_f32 v{r}, v{r}, v{r+16}"); a(f"v_add_f32 v{r+32}, v{r+32}, v{r+48}"); a(f"v_add_f32 v{r}, v{r}, v{r+32}")
    a("s_waitcnt vmcnt(0)")
    a("s_mov_b32 s53, 0x05040100"); a("s_mov_b32 s54, 0x07060302")
    a(f"s_mul_i32 s55, {gw}, 4352"); a(f"s_add_u32 s55, s55, 65536")
    a("v_mul_u32_u24 v9, 1088, v6"); a("v_lshl_add_u32 v9, v5, 2, v9"); a("v_add_u32 v9, s55, v9")
    for nt in range(4):
        r = 96 + nt*4
        a(f"v_cvt_pk_bf16_f32 v{r}, v{r}, v{r+1}"); a(f"v_cvt_pk_bf16_f32 v{r+2}, v{r+2}, v{r+3}")
        at0 = 80 + 2*nt
        a(f"v_perm_b32 v112, v{r}, v{at0}, s53"); a(f"v_perm_b32 v113, v{r}, v{at0}, s54")
        a(f"v_perm_b32 v114, v{r+2}, v{at0+1}, s53"); a(f"v_perm_b32 v115, v{r+2}, v{at0+1}, s54")
        for i in range(4): a(f"ds_write_b32 v9, v{112+i} offset:{i*272 + nt*64}")
    a("v_lshrrev_b32 v9, 2, v1"); a("v_mul_u32_u24 v9, 272, v9"); a("v_and_b32 v10, 3, v1"); a("v_lshl_add_u32 v9, v10, 6, v9"); a("v_add_u32 v9, s55, v9")
    a("s_waitcnt lgkmcnt(0)")
    for q in range(4): a(f"ds_read_b128 {vr(96+4*q,4)}, v9 offset:{16*q}")
    a("s_waitcnt lgkmcnt(0)")
    for q in range(8):
        e0 = 96 + 2*q; e1 = e0 + 1; xr = 224 + q
        a(f"v_lshlrev_b32 v112, 16, v{xr}"); a(f"v_and_b32 v113, 0xffff0000, v{xr}")
        a(f"v_lshlrev_b32 v114, 16, v{e0}"); a(f"v_lshlrev_b32 v115, 16, v{e1}")
        a(f"v_add_f32 v112, v112, v114"); a(f"v_add_f32 v113, v113, v115")
        a(f"v_cvt_pk_bf16_f32 v112, v112, v113")
        a(f"v_lshlrev_b32 v113, 16, v112"); a(f"v_and_b32 v112, 0xffff0000, v112")
        a(f"v_and_b32 v114, 0xffff0000, v{e0}"); a(f"v_and_b32 v115, 0xffff0000, v{e1}")
        a(f"v_add_f32 v113, v113, v114"); a(f"v_add_f32 v112, v112, v115")
        a(f"v_cvt_pk_bf16_f32 v{116+q}, v113, v112")
    a(f"buffer_store_dwordx4 v[116:119], v15, {sr(S_OUT)}, s{S_XOFF} offen")
    a(f"buffer_store_dwordx4 v[120:123], v15, {sr(S_OUT)}, s{S_XOFF} offen offset:16")
    if fc.STAMP:
        a("s_waitcnt vmcnt(0)")
        stp.mark(kind="z")
        stp.flush()
    a("s_endpgm")

def s_path(a, stp):
    sw = f"s{S_RW}"
    a.label("S_PATH")
    a("s_setprio 3")
    CH, HF = "s70", "s71"
    a(f"s_lshr_b32 {CH}, {sw}, 1"); a(f"s_and_b32 {HF}, {sw}, 1")
    vm = Trk(a, "vmcnt")
    a("v_lshrrev_b32 v3, 3, v1"); a("v_and_b32 v4, 7, v1"); a("v_lshrrev_b32 v5, 1, v3")
    a("v_xor_b32 v6, v4, v5"); a("v_xor_b32 v7, 4, v6"); a("v_lshlrev_b32 v3, 10, v3")
    a("v_lshl_add_u32 v10, v6, 4, v3"); a("v_lshl_add_u32 v11, v7, 4, v3")
    for t in range(3):
        a(f"v_add_u32 v3, {64*t}, v1")
        a("v_mul_u32_u24 v4, 5462, v3"); a("v_lshrrev_b32 v4, 16, v4")
        a("v_mul_u32_u24 v5, 12, v4"); a("v_sub_u32 v5, v3, v5")
        a("v_bfe_u32 v6, v4, 3, 1"); a("v_lshlrev_b32 v6, 1, v6"); a("v_xor_b32 v5, v5, v6")
        a("v_mul_u32_u24 v4, 2752, v4")
        a(f"v_lshl_add_u32 v{12+t}, v5, 4, v4")
    a(f"s_lshl_b32 s76, s{S_MT}, 17"); a(f"s_lshl_b32 s53, {sw}, 15"); a("s_add_u32 s76, s76, s53")
    a(f"s_mul_i32 s77, {sw}, 44032"); a(f"s_lshl_b32 s53, s{S_U0}, 6"); a("s_add_u32 s77, s77, s53")
    a(f"s_lshl_b32 s78, {sw}, 12")
    a(f"s_mul_i32 s79, {sw}, 3072"); a("s_add_u32 s79, s79, 16384")
    def dma_stage(stage):
        sb = (stage % NSLOT) * SLOT
        for m in range(2):
            for t in range(3):
                a(f"s_add_u32 m0, s79, {sb + m*12288 + t*1024}")
                if t == 0 and m == 0: a(f"s_add_u32 s53, s77, {stage*64*2752}")
                a(f"buffer_load_dwordx4 v{12+t}, {sr(S_WG + 4*m)}, s53 offen lds"); vm.issue([f"st{stage}"])
        for t in range(4):
            a(f"s_add_u32 m0, s78, {sb + t*1024}")
            a(f"s_add_u32 s53, s76, {t*8192 + stage*128}")
            a(f"buffer_load_dwordx4 v{10 + (t&1)}, {sr(S_X)}, s53 offen lds"); vm.issue([f"st{stage}"])
    for s in range(2): dma_stage(s)
    a(f"s_lshl_b32 s54, s{S_CP}, 2")
    a(f"s_add_u32 s74, s{KP['dsk']}, s54"); a(f"s_addc_u32 s75, s{KP['dsk']+1}, 0")
    a("s_load_dword s73, s[74:75], 0")
    a("v_and_b32 v3, 15, v1"); a("v_lshrrev_b32 v4, 4, v1")
    a("v_lshrrev_b32 v5, 2, v3"); a("v_lshl_add_u32 v5, v4, 3, v5"); a("v_mul_u32_u24 v5, 192, v5")
    a("v_and_b32 v6, 1, v3"); a("v_lshl_add_u32 v5, v6, 3, v5")
    a(f"s_lshr_b32 s53, {sw}, 1"); a("s_mul_i32 s53, s53, 12288"); a("s_add_u32 s53, s53, 16384"); a("v_add_u32 v5, s53, v5")
    a("v_bfe_u32 v6, v3, 1, 1"); a("v_and_b32 v7, 1, v4"); a("v_lshlrev_b32 v7, 1, v7")
    a(f"s_and_b32 s53, {sw}, 1"); a("s_mul_i32 s53, s53, 6")
    for i in range(3):
        a("v_add_u32 v8, s53, v6"); a(f"v_add_u32 v8, {2*i}, v8"); a("v_xor_b32 v8, v8, v7")
        a(f"v_lshl_add_u32 v{16+i}, v8, 4, v5")
    for i in range(4): a(f"v_mov_b32 v{24+i}, 0x3f803f80")
    vm.need(["st0"])
    a("s_waitcnt lgkmcnt(0)")
    a("s_barrier")
    stp.mark()
    dma_stage(2)
    lg = Trk(a, "lgkmcnt")
    def cs_stage(s):
        sb = (s % NSLOT) * SLOT
        for i in range(3): a(f"v_add_u32 v{20+i}, {sb}, v{16+i}") if sb else a(f"v_mov_b32 v{20+i}, v{16+i}")
        for s2 in range(2):
            for i in range(3):
                r = 40 + (s2*3+i)*4
                for hf in range(2):
                    a(f"ds_read_b64_tr_b16 {vr(r+2*hf,2)}, v{20+i} offset:{s2*6144 + hf*768}"); lg.issue(vl(r+2*hf,2))
        for s2 in range(2):
            for i in range(3):
                r = 40 + (s2*3+i)*4
                lg.need(vl(r,4))
                c = "0" if (s == 0 and s2 == 0) else vr(28+4*i,4)
                a(f"v_mfma_f32_16x16x32_bf16 {vr(28+4*i,4)}, {vr(r,4)}, v[24:27], {c}")
    def wd_prefetch():
        a("v_lshrrev_b32 v64, 3, v1"); a("v_and_b32 v65, 7, v1"); a("v_bfe_u32 v66, v64, 1, 2"); a("v_lshlrev_b32 v66, 1, v66")
        a("v_xor_b32 v65, v65, v66"); a("v_lshlrev_b32 v64, 10, v64"); a("v_lshl_add_u32 v64, v65, 4, v64")
        a(f"s_mul_i32 s53, {sw}, 11"); a("s_lshl_b32 s53, s53, 15"); a(f"s_lshl_b32 s54, s{S_CB}, 7"); a("s_add_u32 s53, s53, s54")
        a(f"s_and_b32 s54, {sw}, 1"); a(f"s_mul_i32 s54, s54, {G2_WRING}"); a(f"s_cmp_lt_u32 {sw}, 2"); a("s_cselect_b32 s55, 81920, 0"); a("s_add_u32 s54, s54, s55")
        for step in range(G2_NS):
            for t in range(4):
                a(f"s_add_u32 m0, s54, {step*4096 + t*1024}")
                a(f"s_add_u32 s55, s53, {step*32768 + t*8192}")
                a(f"buffer_load_dwordx4 v64, {sr(S_WD)}, s55 offen lds")
    for s in range(8):
        if s == 0:
            a(f"s_lshl_b32 s53, {sw}, 8"); a(f"s_add_u32 s53, s53, {LT}")
            a("v_lshlrev_b32 v64, 1, v1"); a("v_add_u32 v64, s53, v64")
            for k in range(2):
                for r in range(8):
                    a(f"ds_read_u16 v{80+8*k+r}, v64 offset:{1024*r + 128*k}"); lg.issue([f"v{80+8*k+r}"])
            a(f"v_mov_b32 v65, {LT + 8192}"); a("v_and_b32 v66, 7, v1"); a("v_lshl_add_u32 v65, v66, 3, v65")
            a("ds_read_b64 v[76:77], v65"); lg.issue(["v76", "v77"])
            a(f"s_lshl_b32 s53, s{S_MT}, 4"); a(f"s_add_u32 s53, s53, s{S_NG}"); a("s_lshl_b32 s53, s53, 13"); a(f"s_lshl_b32 s54, {sw}, 11"); a("s_add_u32 s53, s53, s54")
            a("v_lshlrev_b32 v64, 4, v1")
            lg.need(vl(80, 16) + ["v76"])
            for k in range(2):
                for q in range(4): a(f"v_lshl_or_b32 v{68+4*k+q}, v{80+8*k+2*q+1}, 16, v{80+8*k+2*q}")
                a(f"buffer_store_dwordx4 {vr(68+4*k,4)}, v64, {sr(S_XT)}, s53 offen offset:{1024*k} sc1"); vm.issue(["xt"])
            a(f"s_lshl_b32 s53, s{S_MT}, 4"); a(f"s_add_u32 s53, s53, s{S_NG}"); a("s_lshl_b32 s53, s53, 6"); a(f"s_add_u32 s53, s53, {FL_ST}")
            a("v_lshlrev_b32 v66, 3, v66")
            a(f"buffer_store_dwordx2 v[76:77], v66, {sr(S_FL)}, s53 offen sc1"); vm.issue(["xt"])
            a(f"s_cmp_lg_u32 {sw}, 0"); a("s_cbranch_scc1 S_NN")
            a("s_memrealtime s[54:55]"); a("s_waitcnt lgkmcnt(0)"); a("s_or_b32 s54, s54, 1")
            a("v_mov_b32 v208, s54"); a("v_mov_b32 v209, 0"); a("v_mov_b32 v210, 0")
            a("s_mov_b64 exec, 1")
            a(f"global_atomic_cmpswap v211, v210, v[208:209], s[{KP['dbg']}:{KP['dbg']+1}] sc0")
            a("s_mov_b64 exec, -1")
            a.label("S_NN")
        if s == 3:
            a(f"s_cmp_lg_u32 {sw}, 0"); a("s_cbranch_scc1 S_NFX")
            a("v_cmp_eq_u32 vcc, 0, v211"); a("v_cndmask_b32 v211, v211, v208, vcc"); a("s_nop 0")
            a(f"v_readfirstlane_b32 s{S_NONCE}, v211")
            a(f"s_lshl_b32 s53, s{S_MT}, 4"); a(f"s_add_u32 s53, s53, s{S_NG}"); a("s_lshl_b32 s53, s53, 2"); a(f"s_add_u32 s53, s53, {FL_FX}")
            a(f"v_mov_b32 v212, s{S_NONCE}"); a("v_mov_b32 v213, 0")
            a("s_mov_b64 exec, 1"); a(f"buffer_store_dword v212, v213, {sr(S_FL)}, s53 offen sc1"); a("s_mov_b64 exec, -1")
            for k in range(3): pass
            a("v_mov_b32 v214, 0"); a("v_mov_b32 v215, 0"); a(f"v_mov_b32 v216, {T_MISC}"); a("ds_write_b128 v216, v[212:215]")
            a("v_mov_b32 v212, 0"); a("ds_write_b128 v216, v[212:215] offset:16")
            a.label("S_NFX")
        if s == 5:
            a(f"v_mov_b32 v240, {T_MISC}"); a("ds_read_b32 v241, v240"); a("s_waitcnt lgkmcnt(0)"); a(f"v_readfirstlane_b32 s{S_NONCE}, v241")
            lg.q = []
            a("v_lshlrev_b32 v240, 4, v1")
            a(f"buffer_load_dwordx4 v[244:247], v240, {sr(S_FL)}, {FL_FX} offen sc1"); vm.issue(["poll"])
        if s == 6:
            vm.need(["poll"])
            for k in range(4): a(f"v_xor_b32 v{244+k}, s{S_NONCE}, v{244+k}")
            a("v_or_b32 v244, v244, v245"); a("v_or_b32 v246, v246, v247"); a("v_or_b32 v244, v244, v246")
            a("v_cmp_eq_u32 vcc, 0, v244"); a("s_mov_b32 s74, 0"); a("s_cmp_eq_u64 vcc, -1"); a("s_cbranch_scc0 S_NOU")
            a("s_mov_b32 s74, 1")
            a(f"s_lshl_b32 s53, s{S_CP}, 1"); a(f"s_add_u32 s53, s53, {CH}"); a("s_lshl_b32 s53, s53, 4"); a(f"s_lshl_b32 s54, {HF}, 20"); a("s_add_u32 s53, s53, s54")
            a("v_lshlrev_b32 v240, 13, v1")
            a(f"buffer_load_dwordx4 v[220:223], v240, {sr(S_XT)}, s53 offen sc1"); a(f"s_add_u32 s53, s53, {64*8192}")
            a(f"buffer_load_dwordx4 v[224:227], v240, {sr(S_XT)}, s53 offen sc1")
            a.label("S_NOU")
            a(f"s_cmp_lg_u32 {sw}, 0"); a("s_cbranch_scc1 S_NST")
            a("s_cmp_lg_u32 s74, 0"); a("s_cbranch_scc1 S_STOK")
            a("v_and_b32 v240, 15, v1"); a("v_lshlrev_b32 v240, 2, v240")
            a(f"s_lshl_b32 s55, s{S_MT}, 6"); a(f"s_add_u32 s55, s55, {FL_FX}")
            poll(a, 240, 244, "s55", errcode=4)
            a.label("S_STOK")
            a(f"s_lshl_b32 s53, s{S_MT}, 10"); a(f"s_add_u32 s53, s53, {FL_ST}")
            a("v_lshlrev_b32 v240, 4, v1")
            a(f"buffer_load_dwordx4 v[236:239], v240, {sr(S_FL)}, s53 offen sc1")
            a.label("S_NST")
            a(f"s_cmp_ge_u32 {sw}, 2"); a("s_cbranch_scc1 S_NWD0")
            wd_prefetch()
            a.label("S_NWD0")
        if s == 7:
            a(f"s_cmp_lt_u32 {sw}, 2"); a("s_cbranch_scc1 S_NWD1")
            wd_prefetch()
            a.label("S_NWD1")
        cs_stage(s)
        if s == 7:
            a(f"s_mul_i32 s53, {sw}, 192"); a(f"s_add_u32 s53, s53, {T_CS}")
            a("v_lshrrev_b32 v64, 4, v1"); a("v_lshlrev_b32 v64, 4, v64"); a("v_add_u32 v64, s53, v64")
            for i in range(3): a(f"ds_write_b128 v64, {vr(28+4*i,4)} offset:{64*i}")
            a(f"s_cmp_lg_u32 {sw}, 0"); a("s_cbranch_scc1 S_NRC")
            a(f"s_waitcnt vmcnt({4*G2_NS})")
            a("v_rcp_f32 v65, v237"); a("v_rcp_f32 v69, v239")
            a("v_mov_b32 v64, v236"); a("v_mov_b32 v66, v237"); a("v_mov_b32 v67, 0")
            a("v_mov_b32 v68, v238"); a("v_mov_b32 v70, v239"); a("v_mov_b32 v71, 0")
            a(f"v_mul_f32 v65, {NLOG2E:#x}, v65"); a(f"v_mul_f32 v69, {NLOG2E:#x}, v69")
            a("v_lshlrev_b32 v72, 5, v1"); a(f"v_add_u32 v72, {T_RC}, v72")
            a("ds_write_b128 v72, v[64:67]"); a("ds_write_b128 v72, v[68:71] offset:16")
            a.label("S_NRC")
        if s + 1 < 8: vm.need([f"st{s+1}"])
        lg.q = []
        a("s_waitcnt lgkmcnt(0)")
        stp.mark(kind="a")
        a("s_barrier")
        if s + 3 < 8: dma_stage(s + 3)
    stp.mark()
    a("s_setprio 0")
    a(f"v_mov_b32 v250, {T_MISC + 4}"); a("v_mov_b32 v253, 1")
    a("s_lshl_b32 s76, s73, 16"); a("s_and_b32 s77, s73, 0xffff0000")
    a(f"s_cmp_eq_u32 {CH}, 0"); a("s_cselect_b32 s73, s76, s77")
    a("s_cmp_lg_u32 s74, 0"); a("s_cbranch_scc1 S_UOK")
    a("v_lshlrev_b32 v240, 4, v1")
    poll(a, 240, 244, f"{FL_FX}", nwords4=True, errcode=5)
    a(f"s_lshl_b32 s53, s{S_CP}, 1"); a(f"s_add_u32 s53, s53, {CH}"); a("s_lshl_b32 s53, s53, 4"); a(f"s_lshl_b32 s54, {HF}, 20"); a("s_add_u32 s53, s53, s54")
    a("v_lshlrev_b32 v240, 13, v1")
    a(f"buffer_load_dwordx4 v[220:223], v240, {sr(S_XT)}, s53 offen sc1"); a(f"s_add_u32 s53, s53, {64*8192}")
    a(f"buffer_load_dwordx4 v[224:227], v240, {sr(S_XT)}, s53 offen sc1")
    a.label("S_UOK")
    stp.mark()
    a(f"s_lshl_b32 s53, {sw}, 6"); a("v_add_u32 v38, s53, v1")
    a("v_lshlrev_b32 v40, 3, v38"); a("v_sub_u32 v40, 2047, v40"); a("v_cvt_f32_i32 v40, v40")
    for e in range(1, 12): a(f"v_subrev_f32 v{40+e}, {fbits(float(e)):#x}, v40")
    for k in range(6): a(f"v_cvt_pk_bf16_f32 v{52+k}, |v{40+2*k}|, |v{41+2*k}|")
    for e in range(11):
        sel = "WORD_0" if e % 2 == 0 else "WORD_1"
        a(f"v_lshlrev_b32_sdwa v{60+e}, 2, v{52+e//2} dst_sel:DWORD dst_unused:UNUSED_PAD src0_sel:DWORD src1_sel:{sel}")
    a(f"v_max_u32 v67, {4*0x3F7F}, v67")
    for e in range(11): a(f"v_add_u32 v{60+e}, {TABOFF:#x}, v{60+e}")
    for e in range(11): a(f"ds_read_b32 v{72+e}, v{60+e}")
    a("v_cmp_ne_u32 vcc, 255, v38")
    a("s_mov_b32 s54, 0x05040100"); a("s_mov_b32 s55, 0x07060302")
    a("v_lshlrev_b32 v71, 4, v38"); a(f"v_add_u32 v71, {P_KW}, v71")
    a("s_waitcnt lgkmcnt(0)")
    for e in (8, 9, 10): a(f"v_cndmask_b32 v{72+e}, 0, v{72+e}, vcc")
    for ch in range(2):
        for sg in range(4):
            b = 84 + 16*ch + 4*sg
            for k in range(4): a(f"v_perm_b32 v{b+k}, v{72+2*k+sg+1}, v{72+2*k+sg}, s{54+ch}")
            a(f"ds_write_b128 v71, {vr(b,4)} offset:{ch*KCH + sg*KCP}")
    a(f"s_cmp_lg_u32 {sw}, 1"); a("s_cbranch_scc1 SSM_NZ1")
    a("v_mov_b32 v12, 0"); a("v_mov_b32 v13, 0"); a("v_mov_b32 v14, 0"); a("v_mov_b32 v15, 0")
    a("v_bfe_u32 v9, v1, 3, 1"); a(f"v_mul_u32_u24 v9, {KCH}, v9"); a("v_bfe_u32 v10, v1, 1, 2"); a(f"v_mul_u32_u24 v10, {KCP}, v10")
    a("v_add_u32 v9, v9, v10"); a("v_and_b32 v10, 1, v1"); a("v_lshl_add_u32 v9, v10, 4, v9"); a(f"v_add_u32 v9, {P_KW + 4096}, v9")
    a(f"ds_write_b128 v9, v[12:15]")
    a.label("SSM_NZ1")
    a("s_waitcnt vmcnt(0)")
    a(f"s_lshl_b32 s53, {sw}, 2"); a(f"s_add_u32 s53, s53, {T_MISC + 16}"); a("v_mov_b32 v30, s53"); a("ds_write_b32 v30, v253")
    a(f"s_mul_i32 s53, {CH}, {USTR}"); a(f"s_lshl_b32 s54, {HF}, 11"); a("s_add_u32 s53, s53, s54"); a(f"s_add_u32 s53, s53, {T_U + 512}")
    a("v_lshlrev_b32 v39, 4, v1"); a("v_add_u32 v39, s53, v39")
    a("ds_write_b128 v39, v[220:223]"); a("ds_write_b128 v39, v[224:227] offset:1024")
    a(f"s_cmp_lg_u32 {HF}, 0"); a("s_cbranch_scc1 SSM_NZ0")
    a("v_mov_b32 v12, 0"); a("v_mov_b32 v13, 0"); a("v_mov_b32 v14, 0"); a("v_mov_b32 v15, 0")
    a("v_subrev_u32 v39, 512, v39")
    a("s_mov_b32 exec_hi, 0"); a("ds_write_b128 v39, v[12:15]"); a("s_mov_b64 exec, -1")
    a.label("SSM_NZ0")
    sbar(a, 250, 252, 1)
    stp.mark()
    a("v_and_b32 v41, 15, v1"); a("v_lshrrev_b32 v42, 4, v1")
    a("v_sub_u32 v43, 3, v41"); a("v_and_b32 v43, 3, v43")
    a(f"v_mul_u32_u24 v40, {KCP - 2}, v43"); a("v_lshlrev_b32 v44, 1, v41"); a("v_sub_u32 v40, v40, v44"); a("v_lshl_add_u32 v40, v42, 4, v40")
    a(f"s_mul_i32 s53, {CH}, {KCH}"); a(f"s_lshl_b32 s54, {HF}, 8"); a("s_sub_u32 s53, s53, s54"); a(f"s_add_u32 s53, s53, {P_KW + 2*2031 - 64*63}")
    a("v_add_u32 v40, s53, v40")
    a("v_lshlrev_b32 v45, 5, v41"); a("v_lshl_add_u32 v45, v42, 4, v45")
    a(f"s_mul_i32 s53, {CH}, {USTR}"); a("s_sub_u32 s53, s53, s54"); a(f"s_add_u32 s53, s53, {T_U + 480 - 448}")
    a("v_add_u32 v45, s53, v45")
    ACC = 48; BF = [80, 112]; AF = 144
    lg = Trk(a, "lgkmcnt")
    def loadB(rr_, st):
        for tp in range(8):
            r = BF[st] + 4*tp
            a(f"ds_read_b128 {vr(r,4)}, v45 offset:{64*(8*tp - rr_ + 7)}"); lg.issue(vl(r,4))
    def loadA(rr_, q, slot):
        r = AF + 4*slot; off = 64*(63 - 8*q - rr_)
        a(f"ds_read_b64 {vr(r,2)}, v40 offset:{off}"); lg.issue(vl(r,2))
        a(f"ds_read_b64 {vr(r+2,2)}, v40 offset:{off+8}"); lg.issue(vl(r+2,2))
    seq = [(rr_, q) for rr_ in range(4) for q in range(8)]
    loadA(0, 0, 0); loadA(0, 1, 1); loadB(0, 0); loadA(0, 2, 2)
    first = [True]*8
    for n, (rr_, q) in enumerate(seq):
        slot = n % 4; st = rr_ & 1
        if n + 3 < len(seq): loadA(seq[n+3][0], seq[n+3][1], (n+3) % 4)
        if q == 2 and rr_ < 3: loadB(rr_ + 1, st ^ 1)
        ar = AF + 4*slot
        for t in range(q, 8):
            br = BF[st] + 4*(t - q)
            lg.need(vl(ar,4) + vl(br,4))
            c = "0" if first[t] else vr(ACC+4*t,4); first[t] = False
            a(f"v_mfma_f32_16x16x32_bf16 {vr(ACC+4*t,4)}, {vr(ar,4)}, {vr(br,4)}, {c}")
    stp.mark()
    sbar(a, 250, 252, 2)
    a(f"s_lshl_b32 s53, {sw}, 12"); a(f"s_add_u32 s53, s53, {P_KW}")
    a(f"s_xor_b32 s54, {sw}, 1"); a("s_lshl_b32 s54, s54, 12"); a(f"s_add_u32 s54, s54, {P_KW}")
    a("v_lshlrev_b32 v46, 4, v1"); a("v_add_u32 v47, s54, v46"); a("v_add_u32 v46, s53, v46")
    a("v_lshlrev_b32 v144, 5, v41"); a("v_lshl_add_u32 v144, v42, 3, v144")
    a(f"s_lshl_b32 s53, s{S_CP}, 1"); a(f"s_add_u32 s53, s53, {CH}"); a("s_lshl_b32 s53, s53, 12"); a(f"s_lshl_b32 s54, {HF}, 11"); a("s_add_u32 s76, s53, s54")
    a(f"s_mul_i32 s53, {CH}, {USTR}"); a(f"s_lshl_b32 s54, {HF}, 11"); a("s_add_u32 s53, s53, s54"); a(f"s_add_u32 s53, s53, {T_U + 512}")
    a("v_add_u32 v146, s53, v144")
    a(f"s_cmp_eq_u32 {HF}, 0"); a("s_cbranch_scc0 SSM_X1")
    for k, t in enumerate(range(4, 8)): a(f"ds_write_b128 v46, {vr(ACC+4*t,4)} offset:{1024*k}")
    for t in range(4):
        for i in range(4): a(f"v_mov_b32 v{160+4*t+i}, v{ACC+4*t+i}")
    a("s_branch SSM_X2")
    a.label("SSM_X1")
    for k, t in enumerate(range(0, 4)): a(f"ds_write_b128 v46, {vr(ACC+4*t,4)} offset:{1024*k}")
    for t in range(4):
        for i in range(4): a(f"v_mov_b32 v{160+4*t+i}, v{ACC+16+4*t+i}")
    a.label("SSM_X2")
    sbar(a, 250, 252, 3)
    for k in range(4):
        a(f"ds_read_b128 {vr(80+4*k,4)}, v47 offset:{1024*k}")
        a(f"ds_read_b64 {vr(96+2*k,2)}, v146 offset:{512*k}")
    a("s_waitcnt lgkmcnt(0)")
    for k in range(4):
        y = 160 + 4*k
        for i in range(4): a(f"v_add_f32 v{y+i}, v{y+i}, v{80+4*k+i}")
        a(f"v_cvt_pk_bf16_f32 v104, v{y}, v{y+1}"); a(f"v_cvt_pk_bf16_f32 v105, v{y+2}, v{y+3}")
        for j in range(2):
            u = 96 + 2*k + j
            a(f"v_lshlrev_b32 v106, 16, v{u}"); a(f"v_and_b32 v107, 0xffff0000, v{u}")
            a(f"v_mul_f32 v106, s73, v106"); a(f"v_mul_f32 v107, s73, v107")
            a(f"v_cvt_pk_bf16_f32 v108, v106, v107")
            a(f"v_lshlrev_b32 v106, 16, v108"); a(f"v_and_b32 v107, 0xffff0000, v108")
            a(f"v_lshlrev_b32 v109, 16, v{104+j}"); a(f"v_and_b32 v110, 0xffff0000, v{104+j}")
            a(f"v_add_f32 v106, v106, v109"); a(f"v_add_f32 v107, v107, v110")
            a(f"v_cvt_pk_bf16_f32 v{112+2*k+j}, v106, v107")
        a(f"buffer_store_dwordx2 {vr(112+2*k,2)}, v144, {sr(S_AT)}, s76 offen offset:{512*k} sc1")
    a("s_waitcnt vmcnt(0)")
    a(f"s_lshl_b32 s53, {HF}, 9"); a(f"s_lshl_b32 s54, s{S_CP}, 1"); a("s_add_u32 s53, s53, s54"); a(f"s_add_u32 s53, s53, {CH}"); a("s_lshl_b32 s53, s53, 2"); a(f"s_add_u32 s53, s53, {FL_FA}")
    a(f"v_mov_b32 v5, s{S_NONCE}"); a("v_mov_b32 v6, 0")
    a("s_mov_b64 exec, 1")
    a(f"buffer_store_dword v5, v6, {sr(S_FL)}, s53 offen sc1")
    a("s_mov_b64 exec, -1")
    if fc.STAMP:
        a("s_waitcnt vmcnt(0)")
        stp.mark(kind="z")
        stp.flush()
    a("s_endpgm")

def gen_fused(name):
    a = Asm()
    stp = Stamps(a)
    prologue(a, stp, name)
    g = stp.fork(); k = stp.fork()
    g_path(a, g)
    s_path(a, k)
    a.label("K_END")
    a("s_endpgm")
    return kernel_head(name) + a.finish() + kernel_desc(name, 256)

if __name__ == "__main__":
    if "--stamp" in sys.argv:
        fc.STAMP = True; sys.argv.remove("--stamp")
    if "--astamp" in sys.argv:
        fc.STAMP = True; fc.ASTAMP = True; sys.argv.remove("--astamp")
    if "--dbgstamp" in sys.argv:
        fc.STAMP = True; fc.DBGSTAMP = True; sys.argv.remove("--dbgstamp")
    for x in list(sys.argv):
        if x.startswith("--opt="):
            k, v = x[6:].split(":"); OPT[k] = int(v); sys.argv.remove(x)
    if "--nopf" in sys.argv:
        OPT["prefetch"] = False; sys.argv.remove("--nopf")
    TABOFF &= 0xffffffff
    hdr = open("cdna_kernels/" + NAME + ".s.ref").read().split("; Override")[0]
    kn = NAME + "_kernel"
    s = hdr + f"; @launch kernel={kn} grid=(256,1,1) block=(512,1,1) lds={LDS_TOTAL}\n"
    s += '.amdgcn_target "amdgcn-amd-amdhsa--gfx950"\n.text\n' + gen_fused(kn)
    open(sys.argv[1], "w").write(s)
```
